```python
import torch

def _softmax(x, axis=-1):
    return torch.softmax(x, dim=axis)

def _gelu(x):
    return torch.nn.functional.gelu(x, approximate='tanh')

def _silu(x):
    return torch.nn.functional.silu(x)

def _sigmoid(x):
    return torch.sigmoid(x)

def _layernorm(x, axis=-1, eps=1e-05):
    m = x.mean(dim=axis, keepdim=True)
    v = x.var(dim=axis, keepdim=True, unbiased=False)
    return (x - m) / torch.sqrt(v + eps)

def _scatter_add(tgt, idx, src, axis=0):
    return tgt.clone().index_add_(axis, idx, src)

def _segment_sum(src, seg, n):
    out = torch.zeros((n,) + src.shape[1:], dtype=src.dtype)
    return out.index_add_(0, seg, src)

def _pad(x, pw):
    flat = tuple((v for pair in reversed(pw) for v in pair))
    return torch.nn.functional.pad(x, flat)
kernel_name = 'concat_heads__grouped_kv_mqa__memory_aug_recurrent_mem_tr__prompt'

def setup_inputs():

    _w = lambda a: (lambda t: t.to(torch.bfloat16) if t.is_floating_point() else t)(torch.as_tensor(a))

    def _A_setup():
        B, S, D, H = (1, 2048, 640, 32)
        Dh = D // H
        return {'x': _w((lambda *s: torch.randn(*s, dtype=torch.bfloat16) * 0.05)(B, S, D)), 'wq': _w((lambda *s: torch.randn(*s, dtype=torch.bfloat16) * 0.8)(D, H * Dh)), 'wk': _w((lambda *s: torch.randn(*s, dtype=torch.bfloat16) * 0.8)(D, Dh)), 'wv': _w((lambda *s: torch.randn(*s, dtype=torch.bfloat16) * 0.05)(D, Dh)), 'wo': _w((lambda *s: torch.randn(*s, dtype=torch.bfloat16) * 0.05)(H * Dh, D))}
    _A_in = _A_setup()

    def _B_setup():
        B, S, Dm = (1, 2048, 640)
        H, Dh = (32, 128)
        M, seg = (8, 32)
        seg = min(seg, S)
        S = S // seg * seg
        return {'x': _w((lambda *s: torch.randn(*s, dtype=torch.bfloat16) * 0.05)(B, S, Dm)), 'mem0': _w((lambda *s: torch.randn(*s, dtype=torch.bfloat16) * 0.4)(B, M, Dm)), 'Wq': _w((lambda *s: torch.randn(*s, dtype=torch.bfloat16) * 6.4)(Dm, H, Dh) * Dm ** (-0.5)), 'Wk': _w((lambda *s: torch.randn(*s, dtype=torch.bfloat16) * 6.4)(Dm, H, Dh) * Dm ** (-0.5)), 'Wv': _w((lambda *s: torch.randn(*s, dtype=torch.bfloat16) * 0.4)(Dm, H, Dh) * Dm ** (-0.5)), 'Wo': _w((lambda *s: torch.randn(*s, dtype=torch.bfloat16) * 0.4)(H, Dh, Dm) * (H * Dh) ** (-0.5)), 'seg_len': seg}
    _B_in = _B_setup()
    return {'A_x': _A_in['x'], 'A_wq': _A_in['wq'], 'A_wk': _A_in['wk'], 'A_wv': _A_in['wv'], 'A_wo': _A_in['wo'], 'B_x': _B_in['x'], 'B_mem0': _B_in['mem0'], 'B_Wq': _B_in['Wq'], 'B_Wk': _B_in['Wk'], 'B_Wv': _B_in['Wv'], 'B_Wo': _B_in['Wo'], 'B_seg_len': _B_in['seg_len']}

def reference(A_x, A_wq, A_wk, A_wv, A_wo, B_x, B_mem0, B_Wq, B_Wk, B_Wv, B_Wo, B_seg_len):

    def _A_ref(x, wq, wk, wv, wo):
        B, S, D = x.shape
        H = 32
        Dh = D // H
        q = (lambda x, *d: x.permute(*d))((x @ wq).reshape(B, S, H, Dh), 0, 2, 1, 3)
        k = x @ wk
        v = x @ wv
        scores = torch.einsum('bhqd,bkd->bhqk', q, k) * Dh ** (-0.5)
        p = _softmax(scores, axis=-1)
        o = torch.einsum('bhqk,bkd->bhqd', p, v)
        return (lambda x, *d: x.permute(*d))(o, 0, 2, 1, 3).reshape(B, S, H * Dh) @ wo

    def _B_ref(x, mem0, Wq, Wk, Wv, Wo, seg_len):
        B, S, Dm = x.shape
        H, Dh = (Wq.shape[1], Wq.shape[2])
        M = mem0.shape[1]
        scale = Dh ** (-0.5)
        n_seg = S // seg_len
        L = M + seg_len
        idx = torch.arange(L)
        mask = (idx[:, None] < M) | (idx[:, None] >= idx[None, :])
        mem = mem0
        outs = []
        for s in range(n_seg):
            xs = x[:, s * seg_len:(s + 1) * seg_len, :].clone()
            h = torch.concatenate([mem, xs], axis=1)
            q = torch.einsum('btd,dhe->bhte', h, Wq)
            k = torch.einsum('btd,dhe->bhte', h, Wk)
            v = torch.einsum('btd,dhe->bhte', h, Wv)
            scores = torch.einsum('bhqe,bhke->bhqk', q, k) * scale
            scores = torch.where(mask[None, None], scores, -1000000000.0)
            p = _softmax(scores, axis=-1)
            o = torch.einsum('bhqk,bhke->bhqe', p, v)
            o = torch.einsum('bhte,hed->btd', o, Wo)
            mem = o[:, :M, :].clone()
            outs.append(o[:, M:, :])
        return torch.concatenate(outs, axis=1)
    a = _A_ref(A_x, A_wq, A_wk, A_wv, A_wo)
    b = _B_ref(B_x, B_mem0, B_Wq, B_Wk, B_Wv, B_Wo, B_seg_len)
    return torch.concatenate([a, b], axis=-1)
```

```python
KA_AX, KA_AWQ, KA_AWK, KA_AWV, KA_AWO, KA_BX, KA_MEM0, KA_WQ, KA_WK, KA_WV, KA_WO, KA_SEG, KA_OUT, KA_DBG, KA_WS = [8*i for i in range(15)]
NSEG = 64
FLAGS = 0
F_K, F_V, F_KM, F_VM, F_O, F_AQ, F_AKV, F_ATT = 0, 32, 64, 96, 128, 192, 200, 208
MX = 0x20000
MO = 0x40000
PROBE = 0x60000
PART = 0x80000
STAMP = 0x180000
AQ = 0x200000
AO = 0x500000
AKV = 0x7C0000
SEG = 0x800000
D_XCC = 16
D_CHAIN = 32
D_PAR = 33
D_QUEUE = 34
D_ERR = 40
SPIN = 1 << 20
S_ROLE, S_W, S_PAR, S_WS, S_DBG, S_FAST = 3, 4, 5, 6, 8, 10
```

```python
from asmgen import *
from common import *
from g_pro import spin_guard, get_parity, mark
from g_chain import f2u, mf32, mf16, Weave, ops
K_K, K_V, K_QA, K_AQ, K_AO, K_AKV = range(6)
sKIND, sT0, sT1, sT2, sCNT = 11, 12, 13, 14, 15
sSRD, sROW = 16, 20
sX, sOUT, sSEG, sEND, sH, sW10, sFLG, sBUF, sSelLo, sSelHi, sTASK, sSCALE = 36, 38, 40, 41, 42, 43, 44, 46, 47, 48, 49, 50
sPTR, sP2, sP3, sMASK, sLO, sHI, sNEG, sONE = 52, 54, 56, 64, 80, 81, 82, 84
vLane, vN, vG, vT16, vL16, vXg, vX0, vX1, vOut, vOffW, vOffB, vA, vB = range(1, 14)
ACC, XR, PK, GW = 16, 32, 56, 96
XBUF = 40960
L_Q = 2 * XBUF
def gw(ks, H): return GW + (ks >> 1) * 16 + H * 8 + (ks & 1) * 4

def lane_regs(a):
    a('v_and_b32 v%d, 63, v0\nv_and_b32 v%d, 15, v0\nv_bfe_u32 v%d, v0, 4, 2', vLane, vN, vG)
    a('v_lshlrev_b32 v%d, 4, v0\nv_lshlrev_b32 v%d, 4, v%d\ns_lshl_b32 s%d, s%d, 10', vT16, vL16, vLane, sW10, S_W)
    a('s_mov_b32 s%d, 0x05040100\ns_mov_b32 s%d, 0x07060302', sSelLo, sSelHi)
    a('v_lshrrev_b32 v%d, 3, v0\nv_mul_u32_u24 v%d, 1280, v%d\nv_bfe_u32 v%d, v0, 4, 3\nv_and_b32 v%d, 7, v0\nv_xor_b32 v%d, v%d, v%d\nv_lshl_add_u32 v%d, v%d, 4, v%d', vA, vA, vA, vB, vXg, vB, vB, vXg, vXg, vB, vA)
    a('v_lshrrev_b32 v%d, 1, v%d\nv_xor_b32 v%d, v%d, v%d\nv_lshlrev_b32 v%d, 4, v%d\nv_lshl_add_u32 v%d, v%d, 7, v%d\nv_xor_b32 v%d, 64, v%d', vA, vN, vA, vA, vG, vA, vA, vX0, vN, vA, vX1, vX0)

class Loader:
    def __init__(self, a, ring, tmp): self.a = a; self.pend = []; self.n = 0; self.ring = ring; self.tmp = tmp
    def batch(self, voff, ra, rb):
        a = self.a
        if len(self.pend) == len(self.ring): self.retire()
        z = self.ring[self.n % len(self.ring)]; tag = ('w', self.n); self.n += 1
        for q in range(16): a.vm(tag, 'buffer_load_dword v%d, v%d, s[%d:%d], s%d offen', z + q, voff, sSRD, sSRD + 3, sROW + q)
        self.pend.append((tag, z, ra, rb))
    def retire(self):
        a = self.a
        tag, z, ra, rb = self.pend.pop(0)
        a.wv(tag)
        for q in range(8):
            for dst, sel in ((ra + q, sSelLo), (rb + q, sSelHi)):
                if dst < 256: a('v_perm_b32 v%d, v%d, v%d, s%d', dst, z + 2 * q + 1, z + 2 * q, sel)
                else:
                    t = self.tmp + (dst & 3)
                    a('v_perm_b32 v%d, v%d, v%d, s%d\nv_accvgpr_write_b32 a%d, v%d', t, z + 2 * q + 1, z + 2 * q, sel, dst - 256, t)
    def drain(self):
        while self.pend: self.retire()

def row_consts(a, pitch_s):
    for q in range(8):
        for e in range(2): a('s_mul_i32 s%d, s%d, %d', sROW + 2 * q + e, pitch_s, 32 * (q >> 2) + 2 * (q & 3) + e)
    a('s_lshl_b32 s%d, s%d, 3\nv_mul_lo_u32 v%d, v%d, s%d\nv_add_u32 v%d, v%d, v%d', sT0, pitch_s, vA, vG, sT0, vOffW, vOffW, vA)

def srd(a, ptr, off_s, size):
    a('s_add_u32 s%d, s%d, s%d\ns_addc_u32 s%d, s%d, 0\ns_and_b32 s%d, s%d, 0xffff', sSRD, ptr, off_s, sSRD + 1, ptr + 1, sSRD + 1, sSRD + 1)
    a('s_sub_u32 s%d, %d, s%d\ns_mov_b32 s%d, 0x20000', sSRD + 2, size, off_s, sSRD + 3)

def x_dma(a, flag=''):
    f = ops(a, 's_add_u32 m0, s%d, s%d', sBUF, sW10)
    for cb in range(10):
        f += [lambda cb=cb: a.vm('x', 'global_load_lds_dwordx4 v%d, s[%d:%d] offset:%d%s', vXg, sX, sX + 1, cb * 128, flag)]
        if cb < 9: f += ops(a, 's_add_u32 m0, m0, 3968')
    f += ops(a, 's_add_u32 s%d, s%d, 40960\ns_addc_u32 s%d, s%d, 0', sX, sX, sX + 1, sX + 1)
    return f

def gemm(a, trans, W, tsel=None):
    ts = (0, 1) if tsel is None else (0,)
    seq = [(ks, t) for ks in range(20) for t in ts]
    NS = 6
    def rd(i):
        ks, t = seq[i]
        a.ds(('x', i), 'ds_read_b128 %s, v%d offset:%d', vr(XR + 4 * (i % NS), 4), vX1 if ks & 1 else vX0, (ks >> 1) * 4096 + t * 2048)
    for i in range(NS - 1): rd(i)
    for i, (ks, t) in enumerate(seq):
        x = XR + 4 * (i % NS)
        a.wl(('x', i))
        for H in range(2):
            d = ACC + 8 * H + 4 * t
            if trans: mf32(a, d, gw(ks, H), x, d if ks else None)
            else: mf32(a, d, x, gw(ks, H), d if ks else None)
            if H == 0 and i + NS - 1 < len(seq): rd(i + NS - 1)
            else: W.go(1)
    W.flush()

def toggle(a):
    a('s_xor_b32 s%d, s%d, %d', sBUF, sBUF, XBUF)

def flip_read(a):
    a('s_lshl_b32 s%d, s%d, 1\ns_sub_u32 s%d, s%d, %d\nv_add_u32 v%d, s%d, v%d\nv_add_u32 v%d, s%d, v%d', sT0, sBUF, sT0, sT0, XBUF, vX0, sT0, vX0, vX1, sT0, vX1)

def seg_addr(a, dst, seg_s, far, extra):
    a('s_lshr_b32 s%d, s%d, 1\ns_xor_b32 s%d, s%d, s%d\ns_and_b32 s%d, s%d, 1', sT0, seg_s, sT0, sT0, S_PAR, sT0, sT0)
    if far: a('s_xor_b32 s%d, s%d, 1', sT0, sT0)
    a('s_lshl_b32 s%d, s%d, 13\ns_lshl_b32 s%d, s%d, 20\ns_add_u32 s%d, s%d, s%d\ns_add_u32 s%d, s%d, s%d\ns_add_u32 s%d, s%d, %d', sT0, sT0, sT1, seg_s, sT0, sT0, sT1, sT0, sT0, extra, sT0, sT0, SEG)
    a('s_add_u32 s%d, s6, s%d\ns_addc_u32 s%d, s7, 0', dst, sT0, dst + 1)

def flag_addr(a, dst, line_s, base):
    a('s_add_u32 s%d, s%d, %d\ns_lshl_b32 s%d, s%d, 7\ns_add_u32 s%d, s6, s%d\ns_addc_u32 s%d, s7, 0', sT0, line_s, base, sT0, sT0, dst, sT0, dst + 1)

def wait_flag(a, ptr, need, code, nl=1, stride=0):
    L = a.label('L_wf'); L2 = a.label('L_wf')
    a('s_cmp_lg_u32 s%d, 0\ns_cbranch_scc1 %s', S_W, L)
    a('s_mov_b64 exec, %d\nv_mul_u32_u24 v%d, %d, v%d\ns_mov_b32 s%d, %d', (1 << nl) - 1, vA, stride, vLane, sCNT, SPIN)
    a(L2 + ':\nglobal_load_dword v%d, v%d, s[%d:%d] sc1', vB, vA, ptr, ptr + 1)
    spin_guard(a, sCNT, code)
    a('s_waitcnt vmcnt(0)\nv_cmp_gt_u32 vcc, %s, v%d\ns_cbranch_vccnz %s\ns_mov_b64 exec, -1', need, vB, L2)
    a(L + ':')

def signal(a, ptr, val=None):
    L = a.label('L_sg')
    a('s_cmp_lg_u32 s%d, 0\ns_cbranch_scc1 %s\ns_mov_b64 exec, 1\nv_mov_b32 v%d, 0', S_W, L, vA)
    if val is None: a('v_mov_b32 v%d, 1\nglobal_atomic_add v%d, v%d, s[%d:%d]', vB, vA, vB, ptr, ptr + 1)
    else: a('v_mov_b32 v%d, %s\nglobal_store_dword v%d, v%d, s[%d:%d] sc1', vB, val, vA, vB, ptr, ptr + 1)
    a('s_mov_b64 exec, -1\n' + L + ':')

def pack_T(a, t, dst, scale):
    for i in range(0, 4, 2):
        if scale:
            for H in range(2):
                r = ACC + 8 * H + 4 * t + i
                a('v_pk_mul_f32 %s, %s, s[%d:%d]', vr(r, 2), vr(r, 2), sSCALE, sSCALE + 1)
    for i in range(4): a('v_cvt_pk_bf16_f32 v%d, v%d, v%d', dst + i, ACC + 4 * t + i, ACC + 8 + 4 * t + i)

def g_load(a):
    a('L_gload:')
    row_consts(a, sT2)
    a('s_lshl_b32 s%d, s%d, 6', sT2, sT2)
    ld = Loader(a, [32, 48, 64], 80)
    for b in range(10):
        ld.batch(vOffW, GW + 16 * b, GW + 16 * b + 8)
        if b < 9: a('v_add_u32 v%d, s%d, v%d', vOffW, sT2, vOffW)
    ld.drain()
    for k, L in ((K_K, 'L_kloop'), (K_V, 'L_vloop'), (K_QA, 'L_qa'), (K_AQ, 'L_aq'), (K_AO, 'L_ao')):
        a('s_cmp_eq_u32 s%d, %d\ns_cbranch_scc1 %s', sKIND, k, L)
    a('s_branch L_akv')

def g_loop(a, name, trans, epi, nst, flag='', tsel=None, progress=False):
    a('%s:' % name)
    a.vq = []; a.lq = []
    a('s_mov_b32 s%d, 0', sBUF)
    for f in x_dma(a, flag): f()
    a('s_waitcnt vmcnt(0)')
    a('%s_top:' % name)
    a('s_waitcnt vmcnt(%d)\ns_barrier', nst)
    toggle(a)
    if progress:
        a('s_max_i32 s%d, s%d, 1\ns_sub_u32 s%d, s%d, 1', sT2, sSEG, sT2, sT2)
        signal(a, sFLG, 's%d' % sT2)
    W = Weave()
    a('s_add_u32 s%d, s%d, 1\ns_cmp_lt_u32 s%d, s%d\ns_cselect_b32 s%d, 0, 40960\ns_sub_u32 s%d, s%d, s%d\ns_subb_u32 s%d, s%d, 0', sT0, sSEG, sT0, sEND, sT0, sX, sX, sT0, sX + 1, sX + 1)
    W.add(x_dma(a, flag))
    gemm(a, trans, W, tsel)
    epi()
    flip_read(a)
    a('s_add_u32 s%d, s%d, 1\ns_cmp_lt_u32 s%d, s%d\ns_cbranch_scc1 %s_top', sSEG, sSEG, sSEG, sEND, name)
    a('s_waitcnt vmcnt(0)\ns_barrier')
    a('s_cmp_eq_u32 s%d, 0\ns_cselect_b32 s%d, 0, %d\nv_subrev_u32 v%d, s%d, v%d\nv_subrev_u32 v%d, s%d, v%d', sBUF, sT0, XBUF, vX0, sT0, vX0, vX1, sT0, vX1)
    a.vq = []; a.lq = []

def head_cols(a):
    a('s_lshl_b32 s%d, s%d, 6\nv_lshl_add_u32 v%d, v%d, 2, s%d', sT0, S_W, vOffW, vN, sT0)

def b_role(a, kind, ka_w, base_role):
    a('s_sub_u32 s%d, s%d, %d\ns_mov_b32 s%d, %d', sH, S_ROLE, base_role, sKIND, kind)
    a('s_load_dwordx2 s[%d:%d], s[0:1], %d\ns_load_dwordx2 s[%d:%d], s[0:1], %d', sPTR, sPTR + 1, ka_w, sX, sX + 1, KA_BX)
    a('s_lshl_b32 s%d, s%d, 8\ns_mov_b32 s%d, 8192\ns_mov_b32 s%d, 0\ns_mov_b32 s%d, %d\ns_waitcnt lgkmcnt(0)', sT1, sH, sT2, sSEG, sEND, NSEG)
    srd(a, sPTR, sT1, 640 * 8192)
    head_cols(a)
    a('s_branch L_gload')

def kv_loops(a, opt):
    for name, trans, fl, off in (('L_kloop', True, F_K, 0), ('L_vloop', False, F_V, 16384)):
        a('%s:' % name)
        if opt.get('par') is None: get_parity(a, vA, vB, sCNT)
        else: a('s_mov_b32 s%d, %d', S_PAR, opt['par'])
        mark(a, opt, 6, vA, vB)
        flag_addr(a, sFLG, sH, fl)
        a('s_lshl_b32 s%d, s%d, 15\ns_add_u32 s%d, s%d, %d', sH, sH, sH, sH, off)
        a('v_add_u32 v%d, 4096, v%d', vOut, vT16)
        def epi():
            seg_addr(a, sOUT, sSEG, False, sH)
            for j in range(2):
                d = PK + 4 * j
                if trans: pack_T(a, j, d, False)
                else:
                    for t in range(2):
                        r = ACC + 8 * j + 4 * t
                        a('v_cvt_pk_bf16_f32 v%d, v%d, v%d\nv_cvt_pk_bf16_f32 v%d, v%d, v%d', d + 2 * t, r, r + 1, d + 2 * t + 1, r + 2, r + 3)
                a('global_store_dwordx4 v%d, %s, s[%d:%d] sc1', vOut if j else vT16, vr(d, 4), sOUT, sOUT + 1)
        g_loop(a, name + '_g', trans, epi, 2, progress=True)
        signal(a, sFLG, str(NSEG))
        mark(a, opt, 7, vA, vB)
        a('s_branch L_queue')

def qa_role(a, opt):
    a('L_qa:')
    if opt.get('par') is None: get_parity(a, vA, vB, sCNT)
    else: a('s_mov_b32 s%d, %d', S_PAR, opt['par'])
    flag_addr(a, sFLG, sH, F_KM)
    a('s_lshl_b32 s%d, s%d, 15', sH, sH)
    c = f2u(128 ** -0.5 * 1.4426950408889634)
    a('s_mov_b32 s%d, 0x%x\ns_mov_b32 s%d, 0x%x\ns_mov_b32 s%d, 0x%x', sSCALE, c, sSCALE + 1, c, sNEG, f2u(-1e30))
    a('s_mov_b32 s%d, 0x3f803f80\ns_mov_b32 s%d, 0x3f803f80', sONE, sONE + 1)
    a('s_and_b32 s%d, s%d, 1\ns_lshl_b32 s%d, s%d, 4\nv_add_u32 v%d, s%d, v%d\nv_lshlrev_b32 v%d, 2, v%d\nv_sub_u32 v%d, v%d, v%d', sT0, S_W, sT0, sT0, vA, sT0, vN, vB, vG, vA, vA, vB)
    for t in range(2):
        for i in range(4): a('v_cmp_le_i32 s[%d:%d], %d, v%d', sMASK + 8 * t + 2 * i, sMASK + 8 * t + 2 * i + 1, 16 * t + i, vA)
    vKm, vQr, vVx, vVm, vO = 14, 15, vOffW, vOffB, vOut
    a('v_lshrrev_b32 v%d, 2, v%d\nv_and_b32 v%d, 1, v%d\nv_lshl_add_u32 v%d, v%d, 1, v%d\nv_mul_u32_u24 v%d, 288, v%d\nv_lshl_add_u32 v%d, v%d, 4, v%d', vA, vN, vB, vN, vA, vA, vB, vA, vA, vKm, vG, vA)
    a('s_and_b32 s%d, s%d, 1\ns_lshl_b32 s%d, s%d, 12\ns_add_u32 s%d, s%d, %d\nv_add_u32 v%d, s%d, v%d', sT0, S_W, sT1, sT0, sT2, sT1, L_Q, vQr, sT2, vL16)
    a('s_lshr_b32 s%d, s%d, 1\ns_lshl_b32 s%d, s%d, 11\nv_add_u32 v%d, s%d, v%d', sT0, S_W, sT2, sT0, vVx, sT2, vL16)
    a('v_add_u32 v%d, s%d, v%d', vO, sT1, vVx)
    a('s_lshl_b32 s%d, s%d, 10\nv_lshrrev_b32 v%d, 1, v%d\nv_add_u32 v%d, s%d, v%d', sT2, sT0, vVm, vL16, vVm, sT2, vVm)
    KX, VX = 256, 256 + 32
    KM, QB, S, VM, P, E = 32, 64, 16, 48, 28, 80
    LA, OA = 84, 32
    a('s_mov_b32 s%d, 0', sBUF)
    for f in x_dma(a): f()
    a('L_qa_top:')
    a('s_waitcnt vmcnt(0)\ns_barrier')
    a.vq = []; a.lq = []
    toggle(a)
    W = Weave()
    a('s_add_u32 s%d, s%d, 1\ns_cmp_lt_u32 s%d, s%d\ns_cselect_b32 s%d, 0, 40960\ns_sub_u32 s%d, s%d, s%d\ns_subb_u32 s%d, s%d, 0', sT0, sSEG, sT0, sEND, sT0, sX, sX, sT0, sX + 1, sX + 1)
    W.add(x_dma(a))
    gemm(a, True, W)
    flip_read(a)
    a('v_add_u32 v%d, %d, v%d', vA, L_Q, vT16)
    for t in range(2):
        pack_T(a, t, PK + 4 * t, True)
        a('ds_write_b128 v%d, %s offset:%d', vA, vr(PK + 4 * t, 4), 4096 * t)
    seg_addr(a, sP2, sSEG, False, sH)
    seg_addr(a, sOUT, sSEG, True, sH)
    a('s_add_u32 s%d, s%d, 1', sT2, sSEG)
    wait_flag(a, sFLG, 's%d' % sT2, 9, 2, 32 * 128)
    a('s_waitcnt lgkmcnt(0)\ns_barrier')
    a.vq = []
    a('s_add_u32 s%d, s%d, 0x4000\ns_addc_u32 s%d, s%d, 0', sP3, sOUT, sP3 + 1, sOUT + 1)
    for kk in range(4): a.vm('km', 'global_load_dwordx4 %s, v%d, s[%d:%d] offset:%d sc1', vr(KM + 4 * kk, 4), vKm, sP3, sP3 + 1, 64 * kk)
    a('v_add_u32 v%d, 4096, v%d', vA, vL16)
    for t in range(2):
        for kk in range(4): a.vm(('kx', t), 'global_load_dwordx4 %s, v%d, s[%d:%d] offset:%d sc1', xr(KX + 16 * t + 4 * kk, 4), vA if t else vL16, sP2, sP2 + 1, 1024 * kk)
    a('s_add_u32 s%d, s%d, 0x1000\ns_addc_u32 s%d, s%d, 0', sP3, sP3, sP3 + 1, sP3 + 1)
    for j in range(2): a.vm('vm', 'global_load_dwordx2 %s, v%d, s[%d:%d] offset:%d sc1', vr(VM + 4 * j, 2), vVm, sP3, sP3 + 1, 512 * j)
    a('s_add_u32 s%d, s%d, 0x4000\ns_addc_u32 s%d, s%d, 0\nv_add_u32 v%d, 4096, v%d', sP2, sP2, sP2 + 1, sP2 + 1, vB, vVx)
    for j in range(2):
        for H in range(2): a.vm('vx', 'global_load_dwordx4 %s, v%d, s[%d:%d] offset:%d sc1', xr(VX + 8 * j + 4 * H, 4), vB if H else vVx, sP2, sP2 + 1, 1024 * j)
    for kk in range(4): a('ds_read_b128 %s, v%d offset:%d', vr(QB + 4 * kk, 4), vQr, 1024 * kk)
    a('s_waitcnt lgkmcnt(0)')
    a.wv('km')
    for kk in range(4): mf32(a, S + 8, KM + 4 * kk, QB + 4 * kk, S + 8 if kk else None)
    for t in range(2):
        a.wv(('kx', t))
        for kk in range(4): mf32(a, S + 4 * t, KX + 16 * t + 4 * kk, QB + 4 * kk, S + 4 * t if kk else None)
    a('v_mov_b32 v%d, s%d', E, sNEG)
    for t in range(2):
        for i in range(4): a('v_cndmask_b32 v%d, v%d, v%d, s[%d:%d]', S + 4 * t + i, E, S + 4 * t + i, sMASK + 8 * t + 2 * i, sMASK + 8 * t + 2 * i + 1)
    a('v_max3_f32 v%d, v%d, v%d, v%d', E, S, S + 1, S + 2)
    for r in (3, 5, 7): a('v_max3_f32 v%d, v%d, v%d, v%d', E, E, S + r, S + r + 1)
    a('v_max_f32 v%d, v%d, v%d', E, E, S + 9)
    a('v_mov_b32 v%d, v%d\nv_permlane16_swap_b32 v%d, v%d\nv_max_f32 v%d, v%d, v%d', E + 1, E, E, E + 1, E, E, E + 1)
    a('v_mov_b32 v%d, v%d\nv_permlane32_swap_b32 v%d, v%d\nv_max_f32 v%d, v%d, v%d', E + 1, E, E, E + 1, E, E, E + 1)
    for r in range(10): a('v_sub_f32 v%d, v%d, v%d', S + r, S + r, E)
    for r in range(10): a('v_exp_f32 v%d, v%d', S + r, S + r)
    PM = E + 2
    for i in range(4): a('v_cvt_pk_bf16_f32 v%d, v%d, v%d', P + i, S + 2 * i, S + 2 * i + 1)
    a('v_cvt_pk_bf16_f32 v%d, v%d, v%d\nv_mov_b32 v%d, 0', PM, S + 8, S + 9, PM + 1)
    ONE = 88
    a('v_mov_b64 %s, s[%d:%d]\nv_mov_b64 %s, s[%d:%d]', vr(ONE, 2), sONE, sONE + 1, vr(ONE + 2, 2), sONE, sONE + 1)
    a.wv('vm')
    for j in range(2): a('v_mov_b32 v%d, v%d\nv_mov_b32 v%d, 0', VM + 4 * j + 2, VM + 4 * j + 1, VM + 4 * j + 3)
    mf32(a, LA, ONE, P)
    a.wv('vx')
    for j in range(2):
        for H in range(2): mf32(a, OA + 8 * j + 4 * H, VX + 8 * j + 4 * H, P)
    mf16(a, LA, ONE, PM, LA)
    for j in range(2):
        for H in range(2): mf16(a, OA + 8 * j + 4 * H, VM + 4 * j + 2 * H, PM, OA + 8 * j + 4 * H)
    a('v_rcp_f32 v%d, v%d', E, LA)
    for j in range(2):
        for r in range(0, 8, 2): a('v_pk_mul_f32 %s, %s, %s op_sel_hi:[1,0]', vr(OA + 8 * j + r, 2), vr(OA + 8 * j + r, 2), vr(E, 2))
        for i in range(4): a('v_cvt_pk_bf16_f32 v%d, v%d, v%d', PK + 4 * j + i, OA + 8 * j + i, OA + 8 * j + 4 + i)
        a('global_store_dwordx4 v%d, %s, s[%d:%d] offset:%d sc1', vO, vr(PK + 4 * j, 4), sOUT, sOUT + 1, 1024 * j)
    flag_addr(a, sP3, sSEG, F_O)
    a('s_waitcnt vmcnt(0)\ns_barrier')
    signal(a, sP3)
    a('s_add_u32 s%d, s%d, 1\ns_cmp_lt_u32 s%d, s%d\ns_cbranch_scc1 L_qa_top', sSEG, sSEG, sSEG, sEND)
    a('s_waitcnt vmcnt(0)\ns_branch L_done')
    a.vq = []; a.lq = []

def o_role(a, opt, nsets):
    a('L_orole:')
    a('s_load_dwordx2 s[%d:%d], s[0:1], %d\ns_load_dwordx2 s[%d:%d], s[0:1], %d', sPTR, sPTR + 1, KA_WO, sX, sX + 1, KA_OUT)
    a('s_mul_i32 s%d, s%d, %d\ns_lshl_b32 s%d, s%d, 6\ns_add_u32 s%d, s%d, s%d\ns_mov_b32 s%d, 1280\ns_waitcnt lgkmcnt(0)', sT1, S_W, 1024 * 1280, sT0, sH, sT1, sT1, sT0, sT2)
    srd(a, sPTR, sT1, 4096 * 1280)
    a('v_lshlrev_b32 v%d, 2, v%d', vOffW, vN)
    row_consts(a, sT2)
    ld = Loader(a, [32, 48, 64], 80)
    for b in range(16):
        ld.batch(vOffW, 256 + 16 * b, 256 + 16 * b + 8)
        if b < 15: a('v_add_u32 v%d, %d, v%d', vOffW, 64 * 1280, vOffW)
    ld.drain()
    if opt.get('par') is None: get_parity(a, vA, vB, sCNT)
    else: a('s_mov_b32 s%d, %d', S_PAR, opt['par'])
    a('s_lshl_b32 s%d, s%d, 4\nv_add_u32 v%d, s%d, v%d\nv_mul_u32_u24 v%d, 2560, v%d\nv_lshl_add_u32 v%d, v%d, 4, v%d', sT0, S_W, vA, sT0, vN, vA, vA, vA, vG, vA)
    a('s_lshl_b32 s%d, s%d, 6\ns_add_u32 s%d, s%d, 1280\nv_add_u32 v%d, s%d, v%d', sT0, sH, sT0, sT0, vOut, sT0, vA)
    a('s_lshl_b32 s%d, s%d, 18', sH, S_W)
    a('v_add_u32 v%d, 4096, v%d', vOffB, vL16)
    a('s_lshl_b32 s%d, s%d, 12\nv_add_u32 v%d, s%d, v%d', sT0, S_W, vX0, sT0, vL16)
    a('v_add_u32 v%d, s%d, v%d', vX1, sW10, vL16)
    RB, NR = 32, 48
    a('L_o_top:')
    a.vq = []; a.lq = []
    flag_addr(a, sFLG, sSEG, F_O)
    seg_addr(a, sP2, sSEG, True, sH)
    wait_flag(a, sFLG, '32', 10)
    a('s_barrier')
    seq = [(hh, wq, tt) for hh in range(8) for wq in range(4) for tt in range(2)]
    def ldo(i):
        hh, wq, tt = seq[i]
        if wq == 0 and tt == 0 and hh: a('s_add_u32 s%d, s%d, 0x8000\ns_addc_u32 s%d, s%d, 0', sP2, sP2, sP2 + 1, sP2 + 1)
        a.vm(('o', i), 'global_load_dwordx4 %s, v%d, s[%d:%d] offset:%d sc1', vr(RB + 4 * (i % NR), 4), vOffB if tt else vL16, sP2, sP2 + 1, 1024 * wq)
    for i in range(NR): ldo(i)
    for i, (hh, wq, tt) in enumerate(seq):
        kb = 4 * hh + wq
        a.wv(('o', i))
        for H in range(2):
            d = ACC + 8 * H + 4 * tt
            mf32(a, d, 256 + (kb >> 1) * 16 + 8 * H + (kb & 1) * 4, RB + 4 * (i % NR), d if kb else None)
        if i + NR < len(seq): ldo(i + NR)
    for H in range(2):
        for tt in range(2): a('ds_write_b128 v%d, %s offset:%d', vX0, vr(ACC + 8 * H + 4 * tt, 4), 2048 * H + 1024 * tt)
    a('s_mul_i32 s%d, s%d, %d\ns_add_u32 s%d, s%d, s%d\ns_addc_u32 s%d, s%d, 0', sT0, sSEG, 32 * 2560, sOUT, sX, sT0, sOUT + 1, sX + 1)
    a('s_waitcnt lgkmcnt(0)\ns_barrier')
    L = a.label('L_of')
    a('s_cmp_ge_u32 s%d, 2\ns_cbranch_scc1 %s', S_W, L)
    for ww in range(4):
        for H in range(2): a('ds_read_b128 %s, v%d offset:%d', vr(RB + 8 * ww + 4 * H, 4), vX1, 4096 * ww + 2048 * H)
    a('s_waitcnt lgkmcnt(0)')
    for r in range(0, 8, 2):
        a('v_pk_add_f32 %s, %s, %s\nv_pk_add_f32 %s, %s, %s', vr(RB + r, 2), vr(RB + r, 2), vr(RB + 8 + r, 2), vr(RB + 16 + r, 2), vr(RB + 16 + r, 2), vr(RB + 24 + r, 2))
        a('v_pk_add_f32 %s, %s, %s', vr(RB + r, 2), vr(RB + r, 2), vr(RB + 16 + r, 2))
    for i in range(4): a('v_cvt_pk_bf16_f32 v%d, v%d, v%d', PK + i, RB + i, RB + 4 + i)
    a('global_store_dwordx4 v%d, %s, s[%d:%d]', vOut, vr(PK, 4), sOUT, sOUT + 1)
    a(L + ':')
    a('s_add_u32 s%d, s%d, %d\ns_cmp_lt_u32 s%d, %d\ns_cbranch_scc1 L_o_top', sSEG, sSEG, nsets, sSEG, NSEG)
    a('s_waitcnt vmcnt(0)\ns_branch L_done')
    a.vq = []; a.lq = []
```

```python
from asmgen import *
from common import *
from g_pro import spin_guard, get_parity
import struct
def f2u(x): return struct.unpack('<I', struct.pack('<f', x))[0]
vIdx, vL16, vT16, vT16B, vT16C, vT4, vPA, vPB, vRd, vPub, vTw, vTr, vOw = range(1, 14)
ACCQ, ACCK, ACCV, MS, WS, PO = 14, 22, 30, 38, 50, 66
WQ, WK0, WK1, WO, WVR = 256, 256 + 160, 72, 136, 216
def wq(b, H): return WQ + (2 * b + H) * 8
def wk(b, H):
    i = 2 * b + H
    return WK0 + i * 8 if i < 12 else WK1 + (i - 12) * 8
def wo(t, kb): return WO + (2 * t + kb) * 8
def wv_lds(b, H):
    if b < 5: return 2 * b + H
    return 10 + (b - 5) if H == 0 else None
def wv_reg(b): return WVR + (b - 5) * 8
L_M0, L_M1, L_KX, L_VX, L_BSEL, L_WV = 0, 5120, 10240, 18432, 26624, 32768
L_T, L_O = L_M0, L_M1
L_KX2 = 155648
def wv_addr(op, half):
    off = L_WV + op * 8192 + half * 4096
    if off < 65536: return vT16, off
    if off < 131072: return vT16B, off - 65536
    return vT16C, off - 131072
sME, sH, sU, sSTEP, sTAG, sCNT, sT0, sT1, sRED = 11, 12, 13, 14, 15, 16, 17, 18, 19
sSRD = 20
sROW = 24
sPARTA, sPARTB, sMO, sMXW, sMXR, sMOZ, sMXZ, sNEXT, sCUR, sFLG, sSCALE = 24, 26, 28, 30, 32, 34, 36, 38, 40, 42, 44
sMOB, sMXB, sSEGB, sPB, sLO, sHI, sKVF = 46, 48, 50, 52, 54, 55, 56
sPM, sOM, sKXO, sW10, sNEXTV, sNEED, sODD, sONE = 58, 70, 20, 21, 22, 60, 88, 62
sPTR = 60
sST = 72

def smf(a, d, A, B): a('v_smfmac_f32_16x16x64_bf16 %s, %s, %s, v%d', vr(d, 4), vr(A, 4), xr(B, 8), vIdx)
def mf32(a, d, A, B, C=None): a('v_mfma_f32_16x16x32_bf16 %s, %s, %s, %s', vr(d, 4), xr(A, 4), xr(B, 4), '0' if C is None else vr(C, 4))
def mf16(a, d, A, B, C=None): a('v_mfma_f32_16x16x16_bf16 %s, %s, %s, %s', vr(d, 4), xr(A, 2), xr(B, 2), '0' if C is None else vr(C, 4))

def rowconst(p, e): return 32 * (p >> 2) + 8 * (p & 1) + 2 * ((p >> 1) & 1) + e

class Loader:
    RING = [14, 30, 46]
    TMP = 62
    def __init__(self, a): self.a = a; self.pend = []; self.n = 0
    def batch(self, voff, fin):
        a = self.a
        if len(self.pend) == len(self.RING): self.retire()
        z = self.RING[self.n % len(self.RING)]; tag = ('w', self.n); self.n += 1
        for p in range(8):
            for e in range(2):
                a.vm(tag, 'buffer_load_dword v%d, v%d, s[%d:%d], s%d offen', z + 2 * p + e, voff, sSRD, sSRD + 3, sROW + 2 * p + e)
        self.pend.append((tag, z, fin))
    def retire(self):
        tag, z, fin = self.pend.pop(0)
        self.a.wv(tag); fin(z)
    def drain(self):
        while self.pend: self.retire()

def put(a, dst, X, Y, sel):
    if dst < 256:
        a('v_perm_b32 v%d, v%d, v%d, %s', dst, Y, X, sel)
    else:
        t = Loader.TMP + (dst & 7)
        a('v_perm_b32 v%d, v%d, v%d, %s\nv_accvgpr_write_b32 a%d, v%d', t, Y, X, sel, dst - 256, t)

def set_srd(a, ptr, off_s, size):
    a('s_add_u32 s%d, s%d, s%d\ns_addc_u32 s%d, s%d, 0\ns_and_b32 s%d, s%d, 0xffff', sSRD, ptr, off_s, sSRD + 1, ptr + 1, sSRD + 1, sSRD + 1)
    a('s_sub_u32 s%d, %d, s%d\ns_mov_b32 s%d, 0x20000', sSRD + 2, size, off_s, sSRD + 3)

def setup(a, opt):
    a('s_lshr_b32 s%d, s%d, 5\ns_and_b32 s%d, s%d, 31', sME, S_ROLE, sH, S_ROLE)
    a('s_load_dwordx8 s[%d:%d], s[0:1], %d\ns_load_dwordx2 s[%d:%d], s[0:1], %d', sPTR, sPTR + 7, KA_MEM0, sPTR + 8, sPTR + 9, KA_WO)
    pM, pQ, pK, pV, pO = sPTR, sPTR + 2, sPTR + 4, sPTR + 6, sPTR + 8
    vLane, vN, vG, vA, vB = 70, 71, 0, 62, 63
    a('v_lshlrev_b32 v%d, 4, v0\nv_add_u32 v%d, 0x10000, v%d\nv_add_u32 v%d, 0x20000, v%d', vT16, vT16B, vT16, vT16C, vT16)
    a('v_lshlrev_b32 v%d, 2, v0\nv_add_u32 v%d, 0x1000, v%d', vT4, vT4, vT4)
    a('v_and_b32 v%d, 63, v0\nv_and_b32 v%d, 15, v0\nv_lshlrev_b32 v%d, 4, v%d', vLane, vN, vL16, vLane)
    a('v_bfe_u32 v%d, v0, 4, 2', vG)
    a('v_bfe_u32 v%d, v%d, 1, 1\nv_mul_u32_u24 v%d, 0xaaaa, v%d\nv_add_u32 v%d, 0x4444, v%d', vA, vLane, vA, vA, vIdx, vA)
    vRowG, vOffW, vOffB = 9, 10, 11
    a('v_lshrrev_b32 v%d, 1, v%d\nv_lshlrev_b32 v%d, 4, v%d\nv_and_b32 v%d, 1, v%d\nv_lshl_add_u32 v%d, v%d, 2, v%d', vA, vG, vA, vA, vB, vG, vRowG, vB, vA)
    a('s_lshl_b32 s%d, s%d, 6', sT0, S_W)
    a('v_lshlrev_b32 v%d, 13, v%d\nv_lshl_add_u32 v%d, v%d, 2, v%d\nv_add_u32 v%d, s%d, v%d', vA, vRowG, vA, vN, vA, vOffW, sT0, vA)
    for p in range(8):
        for e in range(2): a('s_mov_b32 s%d, %d', sROW + 2 * p + e, rowconst(p, e) * 8192)
    sSelLo, sSelHi, sMe5 = 44, 45, 46
    a('s_mov_b32 s%d, 0x05040100\ns_mov_b32 s%d, 0x07060302\ns_mul_i32 s%d, s%d, %d', sSelLo, sSelHi, sMe5, sME, 5 * 64 * 8192)
    a('s_lshl_b32 s%d, s%d, 8', sT1, sH)
    a('s_waitcnt lgkmcnt(0)')
    ld = Loader(a)
    lo, hi = 's%d' % sSelLo, 's%d' % sSelHi
    def blockoff(b):
        if b < 5: a('s_add_u32 s%d, s%d, %d', sT0, sMe5, b * 64 * 8192)
        else: a('s_sub_u32 s%d, %d, s%d', sT0, b * 64 * 8192, sMe5)
        a('v_add_u32 v%d, s%d, v%d', vOffB, sT0, vOffW)
    def fin_reg(ra, rb):
        def f(z):
            for p in range(8):
                put(a, ra + p, z + 2 * p, z + 2 * p + 1, lo); put(a, rb + p, z + 2 * p, z + 2 * p + 1, hi)
        return f
    def fin_v(b):
        def f(z):
            for H, sel in ((0, lo), (1, hi)):
                op = wv_lds(b, H)
                if op is None:
                    for p in range(8): put(a, wv_reg(b) + p, z + 2 * p, z + 2 * p + 1, sel)
                else:
                    a.wl0()
                    for p in range(8): put(a, Loader.TMP + p, z + 2 * p, z + 2 * p + 1, sel)
                    for half in range(2):
                        base, off = wv_addr(op, half)
                        a.ds('x', 'ds_write_b128 v%d, %s offset:%d', base, vr(Loader.TMP + 4 * half, 4), off)
        return f
    for ptr, home in ((pQ, wq), (pK, wk)):
        ld.drain() if False else None
        set_srd(a, ptr, sT1, 640 * 8192)
        for b in range(10):
            blockoff(b); ld.batch(vOffB, fin_reg(home(b, 0), home(b, 1)))
    set_srd(a, pV, sT1, 640 * 8192)
    for b in range(10):
        blockoff(b); ld.batch(vOffB, fin_v(b))
    for p in range(8):
        for e in range(2): a('s_mov_b32 s%d, %d', sROW + 2 * p + e, rowconst(p, e) * 1280)
    a('s_mul_i32 s%d, s%d, 163840\ns_mul_i32 s%d, s%d, 640\ns_add_u32 s%d, s%d, s%d', sT1, sH, sT0, sME, sT1, sT1, sT0)
    set_srd(a, pO, sT1, 4096 * 1280)
    vOffO, vSel5 = 12, 13
    a('v_mul_u32_u24 v%d, 1280, v%d', vRowG, vRowG)
    a('s_lshl_b32 s%d, s%d, 7\nv_lshl_add_u32 v%d, v%d, 2, v%d\nv_add_u32 v%d, s%d, v%d', sT0, S_W, vOffW, vN, vRowG, vOffW, sT0, vOffW)
    a('s_lshl_b32 s%d, s%d, 5\ns_add_u32 s%d, s%d, 512', sT0, S_W, sT0, sT0)
    a('v_lshrrev_b32 v%d, 1, v%d\nv_lshl_add_u32 v%d, v%d, 2, v%d\nv_add_u32 v%d, s%d, v%d', vOffO, vN, vOffO, vOffO, vRowG, vOffO, sT0, vOffO)
    a('v_and_b32 v%d, 1, v%d\nv_mul_u32_u24 v%d, 0x0202, v%d\nv_lshl_or_b32 v%d, v%d, 16, v%d\nv_add_u32 v%d, 0x05040100, v%d', vSel5, vN, vSel5, vSel5, vSel5, vSel5, vSel5, vSel5, vSel5)
    for P in range(2):
        for kb in range(2):
            a('v_add_u32 v%d, %d, v%d', vOffB, P * 64 + kb * 64 * 1280, vOffW)
            ld.batch(vOffB, fin_reg(wo(2 * P, kb), wo(2 * P + 1, kb)))
    def fin5(kb):
        def f(z):
            for p in range(8): put(a, wo(4, kb) + p, z + 2 * p, z + 2 * p + 1, 'v%d' % vSel5)
        return f
    for kb in range(2):
        a('v_add_u32 v%d, %d, v%d', vOffB, kb * 64 * 1280, vOffO)
        ld.batch(vOffB, fin5(kb))
    ld.drain(); a.wl0()
    vH, vg1, vC = 64, 65, 66
    a('v_lshrrev_b32 v%d, 5, v%d\nv_and_b32 v%d, 1, v%d', vH, vLane, vg1, vG)
    a('s_lshl_b32 s%d, s%d, 15\ns_lshl_b32 s%d, s%d, 6\ns_add_u32 s%d, s%d, s%d', sT0, S_W, sT1, sH, sT0, sT0, sT1)
    a('v_lshrrev_b32 v%d, 3, v%d\nv_lshl_add_u32 v%d, v%d, 2, v%d\nv_lshlrev_b32 v%d, 11, v%d', vA, vN, vA, vA, vG, vA, vA)
    a('v_and_b32 v%d, 7, v%d\nv_lshl_add_u32 v%d, v%d, 3, v%d\nv_add_u32 v%d, s%d, v%d', vB, vN, vA, vB, vA, vPA, sT0, vA)
    a('s_lshl_b32 s%d, s%d, 13\ns_add_u32 s%d, s%d, s%d\ns_add_u32 s%d, s%d, 0x20000', sT0, S_W, sT0, sT0, sT1, sT0, sT0)
    a('v_lshlrev_b32 v%d, 11, v%d\nv_lshl_add_u32 v%d, v%d, 2, v%d\nv_add_u32 v%d, s%d, v%d', vA, vG, vA, vN, vA, vPB, sT0, vA)
    a('s_lshl_b32 s%d, s%d, 5\ns_add_u32 s%d, s%d, s%d\ns_cmp_lt_u32 s%d, 80\ns_cselect_b32 s%d, 1, 0\ns_cselect_b32 s%d, s%d, 0', sU, S_W, sU, sU, sH, sU, sRED, sU, sU)
    a('v_and_b32 v%d, 3, v%d\nv_lshl_add_u32 v%d, v%d, 2, v%d\nv_lshlrev_b32 v%d, 6, v%d', vA, vLane, vA, vG, vA, vA, vA)
    a('v_lshrrev_b32 v%d, 2, v%d\nv_lshl_add_u32 v%d, v%d, 4, v%d\ns_lshl_b32 s%d, s%d, 11\nv_add_u32 v%d, s%d, v%d', vB, vN, vA, vB, vA, sT0, sU, vRd, sT0, vA)
    vRu, vDu = 67, 68
    a('v_bfe_u32 v%d, v%d, 1, 1\nv_lshl_add_u32 v%d, v%d, 1, v%d', vA, vN, vRu, vH, vA)
    a('v_bfe_u32 v%d, v%d, 2, 1\nv_lshlrev_b32 v%d, 1, v%d\nv_lshl_add_u32 v%d, v%d, 2, v%d', vA, vN, vA, vA, vDu, vg1, vA)
    a('s_lshl_b32 s%d, s%d, 6\nv_lshlrev_b32 v%d, 1, v%d\nv_lshl_add_u32 v%d, v%d, 4, v%d\nv_add_u32 v%d, s%d, v%d', sT0, sU, vA, vDu, vA, vRu, vA, vPub, sT0, vA)
    a('s_lshl_b32 s%d, s%d, 6\nv_mul_u32_u24 v%d, 576, v%d\nv_lshl_add_u32 v%d, v%d, 2, v%d\nv_add_u32 v%d, s%d, v%d', sT0, S_W, vA, vG, vA, vN, vA, vTw, sT0, vA)
    a('v_lshrrev_b32 v%d, 2, v%d\nv_and_b32 v%d, 1, v%d\nv_lshl_add_u32 v%d, v%d, 1, v%d', vA, vN, vB, vN, vC, vA, vB)
    a('v_mul_u32_u24 v%d, 288, v%d\nv_lshl_add_u32 v%d, v%d, 4, v%d', vC, vC, vTr, vG, vC)
    a('s_lshl_b32 s%d, s%d, 9\nv_lshlrev_b32 v%d, 1, v%d\nv_add_u32 v%d, v%d, v%d\nv_lshl_add_u32 v%d, v%d, 1, v%d\nv_lshlrev_b32 v%d, 4, v%d', sT0, S_W, vA, vA, vA, vA, vg1, vA, vA, vB, vA, vA)
    a('v_lshl_add_u32 v%d, v%d, 8, v%d\nv_add_u32 v%d, s%d, v%d', vA, vH, vA, vOw, sT0, vA)
    a('v_and_b32 v%d, 12, v%d\nv_and_b32 v%d, 1, v%d\nv_lshl_add_u32 v%d, v%d, 1, v%d\nv_bfe_u32 v%d, v%d, 1, 1\nv_add_u32 v%d, v%d, v%d', vA, vN, vB, vN, vA, vB, vA, vB, vN, vA, vA, vB)
    a('s_cmp_eq_u32 s%d, 2\ns_cselect_b64 vcc, -1, 0\nv_cndmask_b32 v%d, v%d, v%d, vcc', S_W, vA, vN, vA)
    a('v_mov_b32 v%d, 0x3f80\nv_mov_b32 v%d, 0x3f800000', vB, vC)
    for r in range(4):
        a('v_cmp_eq_u32 vcc, %d, v%d\nv_cndmask_b32 v%d, 0, v%d, vcc', 2 * r, vA, 14 + r, vB)
        a('v_cmp_eq_u32 vcc, %d, v%d\nv_cndmask_b32 v%d, v%d, v%d, vcc', 2 * r + 1, vA, 14 + r, 14 + r, vC)
    a.ds('x', 'ds_write_b128 v%d, v[14:17] offset:%d', vT16, L_BSEL)
    if opt.get('par') is None: get_parity(a, 18, 19, sCNT)
    else: a('s_mov_b32 s%d, %d', S_PAR, opt['par'])
    a('s_mul_i32 s%d, s%d, %d\ns_add_u32 s%d, s%d, %d\ns_add_u32 s%d, s6, s%d\ns_addc_u32 s%d, s7, 0', sT0, sME, 2 * 163840, sT0, sT0, PART, sPB, sT0, sPB + 1)
    a('s_lshl_b32 s%d, s%d, 15\ns_add_u32 s%d, s%d, %d\ns_add_u32 s%d, s6, s%d\ns_addc_u32 s%d, s7, 0', sT0, sME, sT0, sT0, MO, sMOB, sT0, sMOB + 1)
    a('s_lshl_b32 s%d, s%d, 13\ns_add_u32 s%d, s%d, %d\ns_add_u32 s%d, s6, s%d\ns_addc_u32 s%d, s7, 0', sT0, S_PAR, sT0, sT0, MX, sMXB, sT0, sMXB + 1)
    a('s_lshl_b32 s%d, s%d, 15\ns_add_u32 s%d, s%d, %d\ns_add_u32 s%d, s6, s%d\ns_addc_u32 s%d, s7, 0', sT0, sH, sT0, sT0, SEG, sSEGB, sT0, sSEGB + 1)
    a('s_lshl_b32 s%d, s%d, 5\ns_add_u32 s%d, s%d, s%d\ns_add_u32 s%d, s%d, %d\ns_lshl_b32 s%d, s%d, 7\ns_add_u32 s%d, s6, s%d\ns_addc_u32 s%d, s7, 0', sT0, sME, sT0, sT0, sH, sT0, sT0, F_KM, sT0, sT0, sFLG, sT0, sFLG + 1)
    a('s_add_u32 s%d, s%d, %d\ns_lshl_b32 s%d, s%d, 7\ns_add_u32 s%d, s6, s%d\ns_addc_u32 s%d, s7, 0', sT0, sH, F_K, sT0, sT0, sKVF, sT0, sKVF + 1)
    c = f2u(128 ** -0.5 * 1.4426950408889634)
    a('s_mov_b32 s%d, 0x%x\ns_mov_b32 s%d, 0x%x', sSCALE, c, sSCALE + 1, c)
    a('s_mov_b32 s%d, 0x%x\ns_mov_b32 s%d, 0x%x', sLO, f2u(2.0 ** -60), sHI, f2u(2.0 ** 60) - f2u(2.0 ** -60))
    a('s_mov_b32 s%d, 0x00550055\ns_mov_b32 s%d, 0x00550055\ns_mov_b32 s%d, 0x33333333\ns_mov_b32 s%d, 0x33333333', sPM, sPM + 1, sOM, sOM + 1)
    a('s_mov_b32 s%d, 0xffff0000\ns_mov_b32 s%d, 0xffff0000', sODD, sODD + 1)
    a('v_mov_b32 v18, -1\nv_mov_b32 v19, -1')
    for slot in range(2):
        a('s_add_u32 s%d, s%d, %d\ns_addc_u32 s%d, s%d, 0', sPARTA, sPB, slot * 163840, sPARTA + 1, sPB + 1)
        a('s_add_u32 s%d, s%d, 16384\ns_addc_u32 s%d, s%d, 0', sPARTB, sPARTA, sPARTB + 1, sPARTA + 1)
        a('global_store_dwordx2 v%d, v[18:19], s[%d:%d] sc1', vPA, sPARTA, sPARTA + 1)
        a('global_store_dwordx2 v%d, v[18:19], s[%d:%d] sc1', vPA, sPARTB, sPARTB + 1)
        a('global_store_dword v%d, v18, s[%d:%d] sc1', vPB, sPARTA, sPARTA + 1)
    L = a.label('L_ci')
    a('s_cmp_eq_u32 s%d, 0\ns_cbranch_scc1 %s', sRED, L)
    a('s_and_b32 s%d, s%d, 3\ns_mul_i32 s%d, s%d, 2560\ns_lshr_b32 s%d, s%d, 2\ns_lshl_b32 s%d, s%d, 5\ns_add_u32 s%d, s%d, s%d', sT0, sU, sT0, sT0, sT1, sU, sT1, sT1, sT0, sT0, sT1)
    a('s_mul_i32 s%d, s%d, 640\ns_add_u32 s%d, s%d, s%d', sT1, sME, sT0, sT0, sT1)
    a('v_bfe_u32 v%d, v%d, 1, 1\nv_mul_u32_u24 v%d, 1280, v%d\nv_lshl_add_u32 v%d, v%d, 3, v%d\nv_bfe_u32 v%d, v%d, 2, 1\nv_lshl_add_u32 v%d, v%d, 2, v%d\nv_add_u32 v%d, s%d, v%d', vA, vN, vA, vA, vA, vG, vA, vB, vN, vA, vB, vA, vA, sT0, vA)
    a('s_mov_b32 exec_lo, 0x00550055\ns_mov_b32 exec_hi, 0x00550055')
    a('global_load_dword v20, v%d, s[%d:%d]', vA, pM, pM + 1)
    a('s_lshl_b32 s%d, s%d, 14', sT1, sME)
    a('s_waitcnt vmcnt(0)\nv_min_u32 v20, -2, v20')
    for slot in range(4):
        d = 20 if slot == 0 else 18
        a('s_add_u32 s%d, s%d, %d\ns_addc_u32 s%d, s%d, 0', sMO, sMOB, slot * 8192, sMO + 1, sMOB + 1)
        a('s_add_u32 s%d, s%d, %d\ns_add_u32 s%d, s%d, s%d\ns_addc_u32 s%d, s%d, 0', sT0, sT1, slot * 32768, sMXW, sMXB, sT0, sMXW + 1, sMXB + 1)
        a('global_store_dword v%d, v%d, s[%d:%d] sc1\nglobal_store_dword v%d, v%d, s[%d:%d] sc1', vPub, d, sMO, sMO + 1, vPub, d, sMXW, sMXW + 1)
    a('s_mov_b64 exec, -1')
    a(L + ':')
    a('s_waitcnt vmcnt(0) lgkmcnt(0)\ns_barrier'); a.lq = []; a.vq = []
    L = a.label('L_cb'); L2 = a.label('L_cb')
    a('s_cmp_lg_u32 s%d, 3\ns_cbranch_scc1 %s', S_W, L)
    a('s_mov_b64 exec, 1\nv_mov_b32 v18, %d\nv_mov_b32 v19, 1\nglobal_atomic_add v18, v19, s[8:9]\ns_mov_b32 s%d, %d', D_CHAIN * 4, sCNT, SPIN)
    a(L2 + ':\nglobal_load_dword v19, v18, s[8:9] sc1')
    spin_guard(a, sCNT, 3)
    a('s_waitcnt vmcnt(0)\nv_cmp_gt_u32 vcc, 64, v19\ns_cbranch_vccnz %s', L2)
    if not opt.get('nokv'):
        L3 = a.label('L_cb')
        a('s_mov_b64 exec, 3\nv_lshlrev_b32 v18, 8, v%d\ns_mov_b32 s%d, %d', vL16, sCNT, SPIN)
        a(L3 + ':\nglobal_load_dword v19, v18, s[%d:%d] sc1', sKVF, sKVF + 1)
        spin_guard(a, sCNT, 4)
        a('s_waitcnt vmcnt(0)\nv_cmp_gt_u32 vcc, 2, v19\ns_cbranch_vccnz %s', L3)
    a('s_mov_b64 exec, -1')
    a(L + ':\ns_barrier')
    a('s_mov_b32 s%d, 0x3f803f80\ns_mov_b32 s%d, 0x3f803f80', sONE, sONE + 1)
    a('s_mov_b32 s%d, 0\ns_lshl_b32 s%d, s%d, 10\ns_mov_b32 s%d, %d', sSTEP, sW10, S_W, sKXO, L_KX)
    for f in seg_ptr(a, sNEXT, 0): f()
    a('s_add_u32 s%d, s%d, 0x4000\ns_addc_u32 s%d, s%d, 0', sNEXTV, sNEXT, sNEXTV + 1, sNEXT + 1)
    a('s_add_u32 m0, s%d, %d\ns_nop 0', sW10, L_KX)
    a('global_load_lds_dwordx4 v%d, s[%d:%d]', vT16, sNEXT, sNEXT + 1)
    a('s_add_u32 m0, s%d, %d\ns_add_u32 s%d, s%d, 0x1000\ns_addc_u32 s%d, s%d, 0', sW10, L_KX + 4096, sNEXT, sNEXT, sNEXT + 1, sNEXT + 1)
    a('global_load_lds_dwordx4 v%d, s[%d:%d]', vT16, sNEXT, sNEXT + 1)
    a('s_add_u32 m0, s%d, %d\ns_nop 0', sW10, L_VX)
    a('global_load_lds_dwordx4 v%d, s[%d:%d]', vT16, sNEXTV, sNEXTV + 1)
    a('s_add_u32 m0, s%d, %d\ns_add_u32 s%d, s%d, 0x1000\ns_addc_u32 s%d, s%d, 0', sW10, L_VX + 4096, sNEXTV, sNEXTV, sNEXTV + 1, sNEXTV + 1)
    a('global_load_lds_dwordx4 v%d, s[%d:%d]', vT16, sNEXTV, sNEXTV + 1)
    if opt.get('tm'): a('s_memrealtime s[92:93]\ns_memtime s[96:97]')

def ops(a, text, *args):
    if args: text = text % args
    ls = []
    for l in text.split('\n'):
        if not l.strip(): continue
        if l.startswith('s_addc'): ls[-1] += '\n' + l
        else: ls.append(l)
    return [(lambda l=l: a(l)) for l in ls]

def seg_ptr(a, dst, delta):
    return ops(a, 's_add_u32 s%d, s%d, %d\ns_lshr_b32 s%d, s%d, 1\ns_xor_b32 s%d, s%d, s%d\ns_and_b32 s%d, s%d, 1\ns_lshl_b32 s%d, s%d, 13', sT0, sSTEP, delta, sT1, sT0, sT1, sT1, S_PAR, sT1, sT1, sT1, sT1) + \
        ops(a, 's_lshl_b32 s%d, s%d, 20\ns_add_u32 s%d, s%d, s%d\ns_add_u32 s%d, s%d, s%d\ns_addc_u32 s%d, s%d, 0', sT0, sT0, sT0, sT0, sT1, dst, sSEGB, sT0, dst + 1, sSEGB + 1)

def stamp(a, opt, i):
    a('; PH %d', i)
    if opt.get('stamp'):
        a('s_memtime s[%d:%d]', sST + 2 * i, sST + 2 * i + 1)

def xdelay(a, cyc):
    while cyc > 0:
        n = min(cyc // 4, 16)
        if n <= 0: break
        a('s_nop %d', n - 1); cyc -= 4 * n

class Weave:
    def __init__(self): self.q = []
    def add(self, fs): self.q += fs if isinstance(fs, list) else [fs]
    def go(self, n):
        for i in range(n):
            if self.q: self.q.pop(0)()
    def flush(self): self.go(len(self.q))

def loop(a, fast, me, kind, opt):
    own = '' if fast else ' sc1'
    sfx = '_%s%d%s' % ('f' if fast else 's', me, kind)
    red, flg = kind == 'r', kind == 'g'
    kvf = flg and not opt.get('nokv')
    PW4, PW1, PO1 = MS + 8, 71, 70
    R = [MS, MS + 4, MS + 8, PO]
    W = Weave()
    def ring_ptrs(dMO, dMXW, dMXR, delta):
        f = ops(a, 's_add_u32 s%d, s%d, %d\ns_and_b32 s%d, s%d, 3\ns_lshl_b32 s%d, s%d, 13\ns_add_u32 s%d, s%d, s%d\ns_addc_u32 s%d, s%d, 0', sT0, sSTEP, delta, sT0, sT0, sT1, sT0, dMO, sMOB, sT1, dMO + 1, sMOB + 1)
        f += ops(a, 's_lshl_b32 s%d, s%d, 15', sT0, sT0)
        if dMXW is not None: f += ops(a, 's_add_u32 s%d, s%d, %d\ns_add_u32 s%d, s%d, s%d\ns_addc_u32 s%d, s%d, 0', sT1, sT0, me * 16384, dMXW, sMXB, sT1, dMXW + 1, sMXB + 1)
        if dMXR is not None: f += ops(a, 's_add_u32 s%d, s%d, %d\ns_add_u32 s%d, s%d, s%d\ns_addc_u32 s%d, s%d, 0', sT1, sT0, (1 - me) * 16384, dMXR, sMXB, sT1, dMXR + 1, sMXB + 1)
        return f
    def own_loads(): a('global_load_dwordx4 %s, v%d, s[%d:%d] sc1\nglobal_load_dword v%d, v%d, s[%d:%d] sc1', vr(PW4, 4), vT16, sMO, sMO + 1, PW1, vT4, sMO, sMO + 1)
    def oth_loads(): a('global_load_dwordx4 %s, v%d, s[%d:%d] sc1\nglobal_load_dword v%d, v%d, s[%d:%d] sc1', vr(PO, 4), vT16, sMXR, sMXR + 1, PO1, vT4, sMXR, sMXR + 1)
    early = opt.get('early', 0)
    def rd_wv(b, H):
        op = wv_lds(b, H); st = WS + 8 * (H if b < 5 else (b & 1)); f = []
        for half in range(2):
            base, off = wv_addr(op, half)
            f.append(lambda base=base, off=off, half=half: a.ds(('wv', b, H), 'ds_read_b128 %s, v%d offset:%d', vr(st + 4 * half, 4), base, off))
        return f
    def rd_m(b, slot):
        return lambda: a.ds(('m', b), 'ds_read_b128 %s, v%d offset:%d', vr(MS + 4 * slot, 4), vL16, b * 1024)
    def idle_work():
        for r in range(ACCQ, ACCQ + 24, 2): a('v_mov_b64 %s, 0', vr(r, 2))
        for f in rd_wv(0, 0) + rd_wv(0, 1): f()
    for f in ring_ptrs(sMO, None, sMXR, 0): f()
    own_loads()
    if early: oth_loads()
    idle_work()
    a('L_step%s:' % sfx)
    a('s_waitcnt vmcnt(%d)', 2 if early else 0)
    a('L_own2%s:' % sfx)
    stamp(a, opt, 0)
    a('v_max3_u32 v0, v%d, v%d, v%d\nv_max3_u32 v0, v0, v%d, v%d\nv_cmp_eq_u32 vcc, -1, v0', PW4, PW4 + 1, PW4 + 2, PW4 + 3, PW1)
    a.ds('mw', 'ds_write_b128 v%d, %s offset:%d', vT16, vr(PW4, 4), L_M0)
    a.ds('mw', 'ds_write_b32 v%d, v%d offset:%d', vT4, PW1, L_M0)
    a('s_cbranch_vccnz L_own%s' % sfx)
    if not early: oth_loads()
    a.wl('mw'); a('s_barrier')
    stamp(a, opt, 1)
    rd_m(0, 0)(); rd_m(1, 1)(); rd_m(2, 2)()
    chk = opt.get('chk', 3)
    SB = Weave()
    SB.add(seg_ptr(a, sCUR, 0))
    SB.add(ops(a, 's_xor_b32 s%d, s%d, 0x2000\ns_add_u32 s%d, s%d, %d\ns_addc_u32 s%d, s%d, 0', sCUR, sCUR, sCUR, sCUR, 0x4000 + me * 0x1000, sCUR + 1, sCUR + 1))
    SB.add(seg_ptr(a, sNEXT, 1))
    SB.add(ops(a, 's_add_u32 s%d, s%d, 0x4000\ns_addc_u32 s%d, s%d, 0', sNEXTV, sNEXT, sNEXTV + 1, sNEXT + 1))
    if red: SB.add(ring_ptrs(sMOZ, sMXZ, None, 3))
    SB.add(ops(a, 's_and_b32 s%d, s%d, 1\ns_mul_i32 s%d, s%d, 163840\ns_add_u32 s%d, s%d, s%d\ns_addc_u32 s%d, s%d, 0', sT0, sSTEP, sT0, sT0, sPARTA, sPB, sT0, sPARTA + 1, sPB + 1))
    SB.add(ops(a, 's_add_u32 s%d, s%d, 16384\ns_addc_u32 s%d, s%d, 0\ns_bfe_u32 s%d, s%d, 0x10001', sPARTB, sPARTA, sPARTB + 1, sPARTA + 1, sTAG, sSTEP))
    if kvf: SB.add(ops(a, 's_add_u32 s%d, s%d, 3\ns_min_u32 s%d, s%d, %d', sNEED, sSTEP, sNEED, sNEED, NSEG))
    def mm(d, A, B, pre=None):
        if pre: a.wl(pre)
        smf(a, d, A, B)
        if W.q: W.go(1); SB.go(1)
        else: SB.go(2)
    for b in range(5):
        A = MS + 4 * (b % 3)
        mm(ACCQ, A, wq(b, 0), ('m', b)); mm(ACCQ + 4, A, wq(b, 1)); mm(ACCK, A, wk(b, 0)); mm(ACCK + 4, A, wk(b, 1))
        W.flush()
        if b < 4: W.add(rd_wv(b + 1, 0))
        mm(ACCV, A, WS, ('wv', b, 0))
        if b < 4: W.add(rd_wv(b + 1, 1))
        if b + 3 < 5: W.add(rd_m(b + 3, b % 3))
        mm(ACCV + 4, A, WS + 8, ('wv', b, 1))
        if b == chk:
            a('s_waitcnt vmcnt(0)')
            a('L_oth2%s:' % sfx)
            stamp(a, opt, 2)
            a('v_max3_u32 v0, v%d, v%d, v%d\nv_max3_u32 v0, v0, v%d, v%d\nv_cmp_eq_u32 vcc, -1, v0', PO, PO + 1, PO + 2, PO + 3, PO1)
            lq0 = list(a.lq)
            a.ds('mw', 'ds_write_b128 v%d, %s offset:%d', vT16, vr(PO, 4), L_M1)
            a.ds('mw', 'ds_write_b32 v%d, v%d offset:%d', vT4, PO1, L_M1)
            a('s_cbranch_vccnz L_oth%s' % sfx)
        if b == min(chk + 1, 4):
            W.flush(); a.wl('mw'); a('s_barrier')
            for bb in range(5, 5 + b - 1): rd_m(bb, bb % 3)()
    if chk + 1 < 4: rd_m(7, 7 % 3)()
    SB.flush()
    VQ = Weave()
    if flg:
        if kvf:
            VQ.add(ops(a, 's_mov_b64 exec, 3\nv_lshlrev_b32 v0, 8, v%d\nglobal_load_dword v%d, v0, s[%d:%d] sc1', vL16, PO1, sKVF, sKVF + 1))
        VQ.add(ops(a, 's_mov_b64 exec, 1\nv_mov_b32 v%d, s%d\nglobal_store_dword v%d, v%d, s[%d:%d] sc1\ns_mov_b64 exec, -1', PW1, sSTEP, vL16, PW1, sFLG, sFLG + 1))
        VQ.flush()
    if red:
        a('v_mov_b32 v0, -1\ns_mov_b64 exec, s[%d:%d]', sPM, sPM + 1)
        a('global_store_dword v%d, v0, s[%d:%d]%s\nglobal_store_dword v%d, v0, s[%d:%d] sc1\ns_mov_b64 exec, -1', vPub, sMOZ, sMOZ + 1, own, vPub, sMXZ, sMXZ + 1)
    W.add(ops(a, 's_xor_b32 s%d, s%d, %d\ns_add_u32 m0, s%d, s%d', sT0, sKXO, L_KX ^ L_KX2, sT0, sW10))
    W.add(ops(a, 'global_load_lds_dwordx4 v%d, s[%d:%d]', vT16, sNEXT, sNEXT + 1))
    W.add(ops(a, 's_add_u32 m0, m0, 0x1000\ns_add_u32 s%d, s%d, 0x1000\ns_addc_u32 s%d, s%d, 0', sNEXT, sNEXT, sNEXT + 1, sNEXT + 1))
    W.add(ops(a, 'global_load_lds_dwordx4 v%d, s[%d:%d]', vT16, sNEXT, sNEXT + 1))
    W.add(rd_wv(9, 0) + rd_wv(8, 0))
    vKX = 0
    W.add(ops(a, 'v_add_u32 v%d, s%d, v%d\ns_xor_b32 s%d, s%d, %d', vKX, sKXO, vL16, sKXO, sKXO, L_KX ^ L_KX2))
    for b in range(5, 10):
        A = MS + 4 * (b % 3)
        mm(ACCQ, A, wq(b, 0), ('m', b)); mm(ACCQ + 4, A, wq(b, 1)); mm(ACCK, A, wk(b, 0))
        if b + 3 < 10: W.q.insert(0, rd_m(b + 3, b % 3))
        mm(ACCK + 4, A, wk(b, 1))
    W.flush()
    stamp(a, opt, 3)
    def post(acc, scale, dst, bydim=True):
        f = ops(a, 'v_pk_add_f32 %s, %s, %s\nv_pk_add_f32 %s, %s, %s', vr(acc, 2), vr(acc, 2), vr(acc + 2, 2), vr(acc + 4, 2), vr(acc + 4, 2), vr(acc + 6, 2))
        if scale:
            f += ops(a, 'v_pk_mul_f32 %s, %s, s[%d:%d]\nv_pk_mul_f32 %s, %s, s[%d:%d]', vr(acc, 2), vr(acc, 2), sSCALE, sSCALE + 1, vr(acc + 4, 2), vr(acc + 4, 2), sSCALE, sSCALE + 1)
        if bydim: f += ops(a, 'v_cvt_pk_bf16_f32 v%d, v%d, v%d\nv_cvt_pk_bf16_f32 v%d, v%d, v%d', dst, acc, acc + 4, dst + 1, acc + 1, acc + 5)
        else: f += ops(a, 'v_cvt_pk_bf16_f32 v%d, v%d, v%d\nv_cvt_pk_bf16_f32 v%d, v%d, v%d', dst, acc, acc + 1, dst + 1, acc + 4, acc + 5)
        return f
    def vblock(b, slot, nxt):
        A = MS + 4 * slot
        a.wl(('m', b)); smf(a, ACCV + 4, A, wv_reg(b)); W.go(1)
        a.wl(('wv', b, 0)); smf(a, ACCV, A, WS + 8 * (b & 1)); W.add(nxt); W.go(2)
    vblock(9, 0, rd_wv(7, 0) + [rd_m(5, 0)])
    QP, KP = ACCQ + 2, ACCK + 6
    for f in post(ACCQ, True, QP): f()
    a.ds('tw', 'ds_write2_b32 v%d, v%d, v%d offset0:0 offset1:72', vTw, QP, QP + 1)
    for f in post(ACCK, False, KP): f()
    a('v_add_u32 v%d, 2304, v%d', PW1, vTw)
    a.ds('tw', 'ds_write2_b32 v%d, v%d, v%d offset0:0 offset1:72', PW1, KP, KP + 1)
    vblock(8, 2, rd_wv(6, 0) + [rd_m(6, 2)])
    vblock(7, 1, rd_wv(5, 0))
    W.flush()
    a.wl('tw'); a('s_barrier')
    stamp(a, opt, 4)
    def rd_kx(t, kk, slot): a.ds(('A', slot), 'ds_read_b128 %s, v%d offset:%d', vr(R[slot], 4), vKX, t * 4096 + kk * 1024)
    def rd_tr(tag, dst, base, kk):
        a.ds(tag, 'ds_read_b128 %s, v%d offset:%d', vr(dst, 4), vTr, base + kk * 64)
    QB = WS
    rd_kx(0, 3, 3); rd_kx(0, 1, 1)
    if me == 0: a('global_store_dword v%d, v%d, s[%d:%d] sc1\nglobal_store_dword v%d, v%d, s[%d:%d] offset:288 sc1', vTw, KP, sCUR, sCUR + 1, vTw, KP + 1, sCUR, sCUR + 1)
    else: a('v_lshrrev_b32 v%d, 1, v%d', PW1, vT16)
    vblock(6, 2, []); rd_tr(('q', 0), QB, L_T, 0); rd_tr(('q', 1), QB + 4, L_T, 1); rd_kx(0, 2, 2)
    vblock(5, 0, []); rd_tr(('q', 2), QB + 8, L_T, 2); rd_tr(('q', 3), QB + 12, L_T, 3); rd_kx(0, 0, 0)
    a('s_cmp_eq_u32 s%d, %d\ns_cbranch_scc1 L_last%s', sSTEP, NSEG - 1, sfx)
    VP = ACCV + 2
    VP2 = ACCV + 4
    def pack_v():
        f = post(ACCV, False, VP, False)
        if me == 1: f += ops(a, 'global_store_dwordx2 v%d, %s, s[%d:%d] sc1', PW1, vr(VP, 2), sCUR, sCUR + 1)
        f += ops(a, 'v_mov_b32 v%d, v%d\nv_mov_b32 v%d, 0', VP2, VP + 1, VP2 + 1)
        return f
    S = [ACCQ, ACCQ + 4, ACCK]; PX, PM, E = ACCK + 4, ACCV, ACCV + 6
    def expcvt(src, dst):
        return ops(a, 'v_exp_f32 v%d, v%d\nv_exp_f32 v%d, v%d\nv_exp_f32 v%d, v%d\nv_cvt_pk_bf16_f32 v%d, v%d, v%d', E, src, E + 1, src + 1, PW1, src + 2, dst, E, E + 1) + \
               ops(a, 'v_exp_f32 v%d, v%d\nv_cvt_pk_bf16_f32 v%d, v%d, v%d', E, src + 3, dst + 1, PW1, E)
    def expm():
        return ops(a, 'v_exp_f32 v%d, v%d\nv_exp_f32 v%d, v%d\nv_mov_b32 v%d, 0\nv_cvt_pk_bf16_f32 v%d, v%d, v%d', E, S[2], E + 1, S[2] + 1, PM + 1, PM, E, E + 1)
    order = (1, 2, 3, 0)
    W.add(pack_v())
    for n, kk in enumerate(order):
        a.wl(('q', kk), ('A', kk)); mf32(a, S[0], R[kk], QB + 4 * kk, S[0] if n else None); rd_kx(1, kk, kk)
        if n >= 1: W.go(2)
    W.flush()
    for n, kk in enumerate(order):
        a.wl(('A', kk)); mf32(a, S[1], R[kk], QB + 4 * kk, S[1] if n else None); rd_tr(('A', kk), R[kk], L_T + 2304, kk)
    for f in expcvt(S[0], PX): f()
    W.add(expcvt(S[1], PX + 2))
    for n, kk in enumerate(order):
        a.wl(('A', kk)); mf32(a, S[2], R[kk], QB + 4 * kk, S[2] if n else None)
        if n < 2: a.ds(('vx', n), 'ds_read_b128 %s, v%d offset:%d', vr(R[kk], 4), vT16, L_VX + 4096 * n)
        if n >= 1: W.go(2)
    W.flush()
    VXa, VXb, ONE = R[order[0]], R[order[1]], R[order[2]]
    a('v_mov_b64 %s, s[%d:%d]\nv_mov_b64 %s, s[%d:%d]', vr(ONE, 2), sONE, sONE + 1, vr(ONE + 2, 2), sONE, sONE + 1)
    LA, OA, OB, OP = QB, QB + 4, QB + 8, QB + 12
    W.add(expm())
    a.wl(('vx', 0)); mf32(a, OA, VXa, PX); W.go(1)
    a.wl(('vx', 1)); mf32(a, OB, VXb, PX); W.go(1)
    mf32(a, LA, ONE, PX); W.flush()
    def pv_m():
        mf16(a, LA, ONE, PM, LA); mf16(a, OA, VP, PM, OA); mf16(a, OB, VP2, PM, OB)
    a('s_add_u32 m0, s%d, %d', sW10, L_VX)
    pv_m()
    a('global_load_lds_dwordx4 v%d, s[%d:%d]', vT16, sNEXTV, sNEXTV + 1)
    a('s_add_u32 m0, m0, 0x1000\ns_add_u32 s%d, s%d, 0x1000\ns_addc_u32 s%d, s%d, 0', sNEXTV, sNEXTV, sNEXTV + 1, sNEXTV + 1)
    a('global_load_lds_dwordx4 v%d, s[%d:%d]', vT16, sNEXTV, sNEXTV + 1)
    def norm(check):
        a('v_rcp_f32 v%d, v%d', E, LA)
        if check: a('v_subrev_u32 v0, s%d, v%d\nv_cmp_lt_u32 vcc, s%d, v0', sLO, LA, sHI)
        for r in (OA, OB, OA + 2, OB + 2): a('v_pk_mul_f32 %s, %s, %s op_sel_hi:[1,0]', vr(r, 2), vr(r, 2), vr(E, 2))
        for i in range(4): a('v_cvt_pk_bf16_f32 v%d, v%d, v%d', OP + i, OA + i, OB + i)
    norm(True)
    a('s_cbranch_vccnz L_fb%s' % sfx)
    a('L_norm%s:' % sfx)
    a('s_mov_b64 exec, s[%d:%d]', sOM, sOM + 1)
    a.ds('ow', 'ds_write_b128 v%d, %s offset:%d', vOw, vr(OP, 4), L_O)
    a('s_mov_b64 exec, -1')
    OUT = ACCQ
    for r in range(OUT, OUT + 20, 2): a('v_mov_b64 %s, 0', vr(r, 2))
    if kvf:
        a('s_mov_b64 exec, 3\ns_waitcnt vmcnt(%d)\nL_kv2%s:\nv_cmp_gt_u32 vcc, s%d, v%d\ns_cbranch_vccnz L_kv%s\ns_mov_b64 exec, -1', 7 - me, sfx, sNEED, PO1, sfx)
    a.wl('ow'); a('s_barrier')
    stamp(a, opt, 5)
    for kb in range(2): a.ds(('o', kb), 'ds_read_b128 %s, v%d offset:%d', vr(MS + 4 * kb, 4), vL16, L_O + 1024 * kb)
    D, BS, RD = MS, MS + 8, WS
    if red: a.ds('bs', 'ds_read_b128 %s, v%d offset:%d', vr(BS, 4), vT16, L_BSEL)
    a('s_add_u32 s%d, s%d, 1', sSTEP, sSTEP)
    for f in ring_ptrs(sMO, sMXW if red else None, sMXR, 0): f()
    def post_pair(t, base):
        x, y = OUT + 4 * t, OUT + 4 * t + 4
        f = ops(a, 'v_pk_add_f32 %s, %s, %s\nv_pk_add_f32 %s, %s, %s', vr(x, 2), vr(x, 2), vr(x + 2, 2), vr(y, 2), vr(y, 2), vr(y + 2, 2))
        f += ops(a, 'v_cvt_pk_bf16_f32 v%d, v%d, v%d\nv_cvt_pk_bf16_f32 v%d, v%d, v%d', x + 2, x, y, x + 3, x + 1, y + 1)
        f += ops(a, 'v_and_or_b32 v%d, v%d, -2, s%d\nv_and_or_b32 v%d, v%d, -2, s%d', x + 2, x + 2, sTAG, x + 3, x + 3, sTAG)
        f += ops(a, 'global_store_dwordx2 v%d, %s, s[%d:%d]%s', vPA, vr(x + 2, 2), base, base + 1, own)
        return f
    for t in range(5):
        a.wl(('o', 0)); smf(a, OUT + 4 * t, MS, wo(t, 0)); W.go(2)
        a.wl(('o', 1)); smf(a, OUT + 4 * t, MS + 4, wo(t, 1))
        if t == 3: W.add(post_pair(0, sPARTA))
        W.go(2)
    W.flush()
    for f in post_pair(2, sPARTB): f()
    x = OUT + 16
    a('v_pk_add_f32 %s, %s, %s\nv_cvt_pk_bf16_f32 v%d, v%d, v%d\nv_and_or_b32 v%d, v%d, -2, s%d', vr(x, 2), vr(x, 2), vr(x + 2, 2), x + 2, x, x + 1, x + 2, x + 2, sTAG)
    a('global_store_dword v%d, v%d, s[%d:%d]%s', vPB, x + 2, sPARTA, sPARTA + 1, own)
    stamp(a, opt, 6)
    if red:
        a.wl('bs')
        if opt.get('ackA', 0) >= 0: a('s_waitcnt vmcnt(%d)', opt.get('ackA', 0))
        xdelay(a, opt.get('dA', 0))
        a('L_pa2%s:' % sfx)
        a('global_load_dwordx4 %s, v%d, s[%d:%d] sc1\nglobal_load_dwordx4 %s, v%d, s[%d:%d] offset:1024 sc1', vr(D, 4), vRd, sPARTA, sPARTA + 1, vr(D + 4, 4), vRd, sPARTA, sPARTA + 1)
        a('s_waitcnt vmcnt(1)')
        mf32(a, RD, D, BS)
        a('v_bitop3_b32 v0, v%d, v%d, s%d bitop3:0x7e\nv_bitop3_b32 v%d, v%d, v%d, s%d bitop3:0x7e', D, D + 1, sTAG, PW1, D + 2, D + 3, sTAG)
        a('s_waitcnt vmcnt(0)')
        mf32(a, RD, D + 4, BS, RD)
        a('v_bitop3_b32 v%d, v%d, v%d, s%d bitop3:0x7e\nv_bitop3_b32 v%d, v%d, v%d, s%d bitop3:0x7e', PO, D + 4, D + 5, sTAG, PO + 1, D + 6, D + 7, sTAG)
        a('v_or3_b32 v0, v0, v%d, v%d\nv_bitop3_b32 v0, v0, v%d, 1 bitop3:0xa8\nv_cmp_ne_u32 vcc, 0, v0', PW1, PO, PO + 1)
        a('v_pk_add_f32 %s, %s, %s\nv_add_f32 v%d, v%d, v%d', vr(RD, 2), vr(RD, 2), vr(RD + 2, 2), RD, RD, RD + 1)
        a('s_cbranch_vccnz L_pa%s' % sfx)
        stamp(a, opt, 7)
        a('v_mov_b32_dpp v%d, v%d quad_perm:[1,1,3,3] row_mask:0xf bank_mask:0xf', RD + 1, RD)
        a('v_cvt_pk_bf16_f32 v%d, v%d, v%d\nv_min_u32 v%d, -2, v%d', RD, RD, RD + 1, RD, RD)
        a('s_mov_b64 exec, s[%d:%d]', sPM, sPM + 1)
        if opt.get('pubord', 0) == 0:
            a('global_store_dword v%d, v%d, s[%d:%d]%s\nglobal_store_dword v%d, v%d, s[%d:%d] sc1\ns_mov_b64 exec, -1', vPub, RD, sMO, sMO + 1, own, vPub, RD, sMXW, sMXW + 1)
            if opt.get('ackB', 1) == 1: a('s_waitcnt vmcnt(1)')
        else:
            a('global_store_dword v%d, v%d, s[%d:%d] sc1\nglobal_store_dword v%d, v%d, s[%d:%d]%s\ns_mov_b64 exec, -1', vPub, RD, sMXW, sMXW + 1, vPub, RD, sMO, sMO + 1, own)
            if opt.get('ackB', 1) == 1: a('s_waitcnt vmcnt(0)')
    else:
        a.wl0()
    if opt.get('ackB', 1) == 2:
        a.lq = []; idle_work()
    a('s_barrier')
    if opt.get('ackB', 1) == 3:
        a.lq = []; idle_work()
    xdelay(a, opt.get('dB', 0))
    own_loads()
    if early: oth_loads()
    if opt.get('stamp'):
        a('s_waitcnt lgkmcnt(0)')
        a('s_lshl_b32 s%d, s%d, 2\ns_add_u32 s%d, s%d, s%d\ns_lshl_b32 s%d, s%d, 6\ns_add_u32 s%d, s%d, s%d\ns_lshl_b32 s%d, s%d, 5\ns_add_u32 s%d, s%d, %d', sT0, S_ROLE, sT0, sT0, S_W, sT0, sT0, sT0, sT0, sSTEP, sT0, sT0, sT0, sT0, 160 * 1024 - 2048 - 0 * STAMP)
        a('s_lshl_b32 s%d, s%d, 5\ns_lshl_b32 s%d, s%d, 9\ns_and_b32 s%d, s%d, 0x1e0\ns_add_u32 s%d, s%d, s%d\ns_add_u32 s%d, s%d, 30720', sT0, sSTEP, sT1, S_W, sT0, sT0, sT0, sT0, sT1, sT0, sT0)
        a('v_mov_b32 v0, s%d', sT0)
        for i in range(8): a('v_mov_b32 v%d, s%d', ACCQ + i, sST + 2 * i)
        a('ds_write_b128 v0, %s\nds_write_b128 v0, %s offset:16\ns_waitcnt lgkmcnt(0)', vr(ACCQ, 4), vr(ACCQ + 4, 4))
    if opt.get('ackB', 1) < 2:
        a.lq = []; idle_work()
    a('s_branch L_step%s' % sfx)
    a.lq = []
    def retry(name, code, body, back):
        a('L_%s%s:' % (name, sfx))
        a('s_add_u32 s%d, s%d, 1\ns_cmp_gt_u32 s%d, %d\ns_cbranch_scc1 L_bail%d', sCNT, sCNT, sCNT, SPIN, code)
        body()
        a('s_branch L_%s%s' % (back, sfx))
    retry('own', 5, lambda: (a('s_waitcnt lgkmcnt(0)'), own_loads(), a('s_waitcnt vmcnt(0)')), 'own2')
    retry('oth', 6, lambda: (a('s_waitcnt lgkmcnt(0)'), oth_loads(), a('s_waitcnt vmcnt(0)')), 'oth2')
    if red: retry('pa', 8, lambda: None, 'pa2')
    if kvf: retry('kv', 7, lambda: a('v_lshlrev_b32 v0, 8, v%d\nglobal_load_dword v%d, v0, s[%d:%d] sc1\ns_waitcnt vmcnt(0)', vL16, PO1, sKVF, sKVF + 1), 'kv2')
    a('L_fb%s:' % sfx)
    a('v_max3_f32 v0, v%d, v%d, v%d', S[0], S[0] + 1, S[0] + 2)
    for r in range(S[0] + 3, S[0] + 11, 2): a('v_max3_f32 v0, v0, v%d, v%d', r, r + 1)
    a('v_max_f32 v0, v0, v%d', S[0] + 11)
    a('v_mov_b32 v%d, v0\nv_permlane16_swap_b32 v0, v%d\nv_max_f32 v0, v0, v%d', E, E, E)
    a('v_mov_b32 v%d, v0\nv_permlane32_swap_b32 v0, v%d\nv_max_f32 v0, v0, v%d', E, E, E)
    for r in range(S[0], S[0] + 12): a('v_sub_f32 v%d, v%d, v0', r, r)
    for f in expcvt(S[0], PX) + expcvt(S[1], PX + 2) + expm(): f()
    mf32(a, LA, ONE, PX); mf32(a, OA, VXa, PX); mf32(a, OB, VXb, PX); pv_m()
    norm(False)
    a('s_branch L_norm%s' % sfx)
    a('L_last%s:' % sfx)
    for f in pack_v(): f()
    a('s_waitcnt vmcnt(0) lgkmcnt(0)\ns_barrier')
    if flg:
        a('s_mov_b64 exec, 1\nv_mov_b32 v0, 0\nv_mov_b32 v1, %d\nglobal_store_dword v0, v1, s[%d:%d] sc1\ns_waitcnt vmcnt(0)\ns_mov_b64 exec, -1', NSEG, sFLG, sFLG + 1)
    a('s_branch L_chain_end')
    a.lq = []; a.vq = []

def chain(a, opt):
    setup(a, opt)
    a('s_mov_b32 s%d, 0', sCNT)
    variants = [(f, me, k) for f in (1, 0) for me in (0, 1) for k in 'rig']
    a('s_cmp_eq_u32 s%d, 3\ns_cselect_b32 s%d, 2, 1\ns_cmp_lg_u32 s%d, 0\ns_cselect_b32 s%d, 0, s%d', S_W, sT0, sRED, sT0, sT0)
    a('s_mul_i32 s%d, s%d, 3\ns_add_u32 s%d, s%d, s%d\ns_cmp_eq_u32 s%d, 0\ns_cselect_b32 s%d, 6, 0\ns_add_u32 s%d, s%d, s%d', sT1, sME, sT0, sT0, sT1, S_FAST, sT1, sT0, sT0, sT1)
    for i in range(1, len(variants)): a('s_cmp_eq_u32 s%d, %d\ns_cbranch_scc1 L_var%d', sT0, i, i)
    for i, (f, me, k) in enumerate(variants):
        a('L_var%d:' % i)
        loop(a, f, me, k, opt)
    a('L_chain_end:')
    if opt.get('stamp'):
        a('s_barrier\nv_lshrrev_b32 v0, 1, v%d\nds_read_b64 v[14:15], v0 offset:30720\ns_lshl_b32 s%d, s%d, 11\ns_add_u32 s%d, s%d, %d\nv_add_u32 v0, s%d, v0\ns_waitcnt lgkmcnt(0)\nglobal_store_dwordx2 v0, v[14:15], s[6:7]\ns_waitcnt vmcnt(0)', vT16, sT0, S_ROLE, sT0, sT0, STAMP, sT0)
    if opt.get('tm'):
        a('s_memrealtime s[94:95]\ns_memtime s[98:99]\ns_waitcnt lgkmcnt(0)\ns_sub_u32 s98, s98, s96\ns_lshl_b32 s98, s98, 8\ns_min_u32 s16, s16, 255\ns_or_b32 s16, s16, s98\ns_lshl_b32 s%d, s%d, 4\ns_add_u32 s%d, s%d, %d\nv_mov_b32 v0, s%d', sT0, S_ROLE, sT0, sT0, STAMP + 0x40000, sT0)
        a('v_mov_b32 v14, s90\nv_mov_b32 v15, s92\nv_mov_b32 v16, s94\nv_mov_b32 v17, s%d\nglobal_store_dwordx4 v0, v[14:17], s[6:7]\ns_waitcnt vmcnt(0)', sCNT)
    a('s_branch L_end')
```

```python
from asmgen import *
from common import *
from g_pro import spin_guard
from g_chain import f2u, Weave, ops
from g_bulk import *
N_KV, N_Q, N_ATT, N_O = 8, 40, 128, 40

def queue(a):
    a('L_queue:')
    L = a.label('L_qq')
    a('s_barrier\ns_cmp_lg_u32 s%d, 0\ns_cbranch_scc1 %s', S_W, L)
    a('s_mov_b64 exec, 1\nv_mov_b32 v%d, %d\nv_mov_b32 v%d, 1\nglobal_atomic_add v%d, v%d, v%d, s[8:9] sc0', vA, D_QUEUE * 4, vB, vB, vA, vB)
    a('v_mov_b32 v%d, %d\ns_waitcnt vmcnt(0)\nds_write_b32 v%d, v%d\ns_waitcnt lgkmcnt(0)\ns_mov_b64 exec, -1', vA, L_Q, vA, vB)
    a(L + ':\ns_barrier\nv_mov_b32 v%d, %d\nds_read_b32 v%d, v%d\ns_waitcnt lgkmcnt(0)\nv_readfirstlane_b32 s%d, v%d', vA, L_Q, vB, vA, sTASK, vB)
    a('s_cmp_lt_u32 s%d, %d\ns_cbranch_scc1 L_t_kv', sTASK, N_KV)
    a('s_cmp_lt_u32 s%d, %d\ns_cbranch_scc1 L_t_q', sTASK, N_KV + N_Q)
    a('s_cmp_lt_u32 s%d, %d\ns_cbranch_scc1 L_att', sTASK, N_KV + N_Q + N_ATT)
    a('s_cmp_ge_u32 s%d, %d\ns_cbranch_scc1 L_done', sTASK, N_KV + N_Q + N_ATT + N_O)
    def split5(base):
        a('s_sub_u32 s%d, s%d, %d\ns_mul_i32 s%d, s%d, 52\ns_lshr_b32 s%d, s%d, 8\ns_mul_i32 s%d, s%d, 5\ns_sub_u32 s%d, s%d, s%d', sT0, sTASK, base, sTASK, sT0, sTASK, sTASK, sT1, sTASK, sH, sT0, sT1)
    def segs():
        a('s_lshl_b32 s%d, s%d, 3\ns_add_u32 s%d, s%d, 8\ns_mul_i32 s%d, s%d, 40960\ns_add_u32 s%d, s%d, s%d\ns_addc_u32 s%d, s%d, 0', sSEG, sTASK, sEND, sSEG, sT0, sSEG, sX, sX, sT0, sX + 1, sX + 1)
    split5(N_KV + N_Q + N_ATT)
    a('s_load_dwordx2 s[%d:%d], s[0:1], %d\ns_load_dwordx2 s[%d:%d], s[0:1], %d', sPTR, sPTR + 1, KA_AWO, sP2, sP2 + 1, KA_OUT)
    a('s_add_u32 s%d, s6, %d\ns_addc_u32 s%d, s7, 0\ns_mov_b32 s%d, %d\ns_branch L_t_w', sX, AO, sX + 1, sKIND, K_AO)
    a('L_t_q:')
    split5(N_KV)
    a('s_load_dwordx2 s[%d:%d], s[0:1], %d\ns_load_dwordx2 s[%d:%d], s[0:1], %d\ns_mov_b32 s%d, %d', sPTR, sPTR + 1, KA_AWQ, sX, sX + 1, KA_AX, sKIND, K_AQ)
    a('L_t_w:')
    a('s_lshl_b32 s%d, s%d, 8\ns_mov_b32 s%d, 1280\ns_waitcnt lgkmcnt(0)', sT1, sH, sT2)
    srd(a, sPTR, sT1, 640 * 1280)
    segs(); head_cols(a)
    a('s_branch L_gload')
    a('L_t_kv:')
    a('s_load_dwordx4 s[%d:%d], s[0:1], %d\ns_load_dwordx2 s[%d:%d], s[0:1], %d\ns_mov_b32 s%d, %d', sPTR, sPTR + 3, KA_AWK, sX, sX + 1, KA_AX, sKIND, K_AKV)
    a('s_mov_b32 s%d, 0\ns_mov_b32 s%d, 40\ns_waitcnt lgkmcnt(0)', sT1, sT2)
    a('s_bitcmp1_b32 s%d, 0\ns_cselect_b32 s%d, s%d, s%d\ns_cselect_b32 s%d, s%d, s%d', S_W, sPTR, sPTR + 2, sPTR, sPTR + 1, sPTR + 3, sPTR + 1)
    srd(a, sPTR, sT1, 640 * 40)
    segs()
    a('v_lshlrev_b32 v%d, 2, v%d\nv_mov_b32 v%d, 0x100000\nv_cmp_gt_u32 vcc, 10, v%d\nv_cndmask_b32 v%d, v%d, v%d, vcc', vOffW, vN, vA, vN, vOffW, vA, vOffW)
    a('s_branch L_gload')

def a_loops(a):
    for name, pitch, scale, flag in (('L_aq', 1280, True, ''), ('L_ao', 2560, False, ' sc1')):
        a('%s:' % name)
        a('s_lshl_b32 s%d, s%d, 8\ns_lshl_b32 s%d, s%d, 6\ns_add_u32 s%d, s%d, s%d', sT0, sH, sT1, S_W, sT0, sT0, sT1)
        a('v_mul_u32_u24 v%d, %d, v%d\nv_lshl_add_u32 v%d, v%d, 4, v%d\nv_add_u32 v%d, s%d, v%d\nv_add_u32 v%d, %d, v%d', vA, pitch, vN, vA, vG, vA, vOut, sT0, vA, vOffB, 16 * pitch, vOut)
        if scale:
            c = f2u(20 ** -0.5 * 1.4426950408889634)
            a('s_mov_b32 s%d, 0x%x\ns_mov_b32 s%d, 0x%x', sSCALE, c, sSCALE + 1, c)
            a('s_add_u32 s%d, s6, %d\ns_addc_u32 s%d, s7, 0', sP2, AQ, sP2 + 1)
        else:
            flag_addr(a, sFLG, sTASK, F_ATT)
            wait_flag(a, sFLG, '16', 11)
            a('s_barrier')
        def epi():
            a('s_mul_i32 s%d, s%d, %d\ns_add_u32 s%d, s%d, s%d\ns_addc_u32 s%d, s%d, 0', sT0, sSEG, 32 * pitch, sOUT, sP2, sT0, sOUT + 1, sP2 + 1)
            for t in range(2):
                pack_T(a, t, PK + 4 * t, scale)
                a('global_store_dwordx4 v%d, %s, s[%d:%d]%s', vOffB if t else vOut, vr(PK + 4 * t, 4), sOUT, sOUT + 1, ' sc1' if scale else '')
        g_loop(a, name + '_g', True, epi, 2, flag)
        if scale:
            flag_addr(a, sFLG, sTASK, F_AQ); signal(a, sFLG)
        a('s_branch L_queue')
    a('L_akv:')
    a('s_lshr_b32 s%d, s%d, 1\ns_lshl_b32 s%d, s%d, 11\nv_add_u32 v%d, s%d, v%d\nv_add_u32 v%d, s%d, v%d', sT2, S_W, sT0, sT2, vX0, sT0, vX0, vX1, sT0, vX1)
    a('s_add_u32 s%d, s6, %d\ns_addc_u32 s%d, s7, 0', sP2, AKV, sP2 + 1)
    a('s_bitcmp1_b32 s%d, 0\ns_cbranch_scc1 L_av', S_W)
    a('s_lshl_b32 s%d, s%d, 8\nv_lshlrev_b32 v%d, 9, v%d\nv_lshl_add_u32 v%d, v%d, 4, v%d\nv_add_u32 v%d, s%d, v%d', sT0, sT2, vA, vG, vA, vN, vA, vOut, sT0, vA)
    def base(): a('s_lshl_b32 s%d, s%d, 12\ns_add_u32 s%d, s%d, s%d\ns_addc_u32 s%d, s%d, 0', sT0, sSEG, sOUT, sP2, sT0, sOUT + 1, sP2 + 1)
    def epik():
        base(); pack_T(a, 0, PK, False)
        a('global_store_dwordx4 v%d, %s, s[%d:%d] sc1', vOut, vr(PK, 4), sOUT, sOUT + 1)
    g_loop(a, 'L_ak_g', True, epik, 1, tsel=0)
    a('s_branch L_akv_end')
    a('L_av:')
    a('s_lshl_b32 s%d, s%d, 10\ns_add_u32 s%d, s%d, 2048\nv_lshrrev_b32 v%d, 1, v%d\nv_lshlrev_b32 v%d, 9, v%d\nv_lshl_add_u32 v%d, v%d, 5, v%d', sT0, sT2, sT0, sT0, vA, vG, vA, vA, vA, vN, vA)
    a('v_and_b32 v%d, 1, v%d\nv_lshl_add_u32 v%d, v%d, 3, v%d\nv_add_u32 v%d, s%d, v%d', vB, vG, vA, vB, vA, vOut, sT0, vA)
    a('s_mov_b32 s%d, 0x14001400\ns_mov_b32 s%d, 0x14001400\nv_mov_b32 v%d, 0x3f803f80', sMASK, sMASK + 1, vOffB)
    def epiv():
        base()
        for H in range(2):
            r = ACC + 8 * H; d = PK + 2 * H
            a('v_cvt_pk_bf16_f32 v%d, v%d, v%d\nv_cvt_pk_bf16_f32 v%d, v%d, v%d', d, r, r + 1, d + 1, r + 2, r + 3)
            if H == 0:
                for i in range(2): a('v_cndmask_b32 v%d, v%d, v%d, s[%d:%d]', d + i, d + i, vOffB, sMASK, sMASK + 1)
            a('global_store_dwordx2 v%d, %s, s[%d:%d] offset:%d sc1', vOut, vr(d, 2), sOUT, sOUT + 1, 16 * H)
    g_loop(a, 'L_av_g', False, epiv, 2, tsel=0)
    a('L_akv_end:')
    a('s_lshr_b32 s%d, s%d, 1\ns_lshl_b32 s%d, s%d, 11\nv_subrev_u32 v%d, s%d, v%d\nv_subrev_u32 v%d, s%d, v%d', sT2, S_W, sT0, sT2, vX0, sT0, vX0, vX1, sT0, vX1)
    a('s_add_u32 s%d, s6, %d\ns_addc_u32 s%d, s7, 0', sFLG, F_AKV * 128, sFLG + 1)
    signal(a, sFLG)
    a('s_branch L_queue')

def att(a, opt):
    Q, O, S, KV, IDX = 16, 48, 112, 176, 14
    vQ, E = 15, 240
    def mf(d, A, B, C=None): a('v_mfma_f32_32x32x16_bf16 %s, %s, %s, %s', vr(d, 16), vr(A, 4), vr(B, 4), '0' if C is None else vr(C, 16))
    def sm(d, A, B): a('v_smfmac_f32_32x32x32_bf16 %s, %s, %s, v%d', vr(d, 16), vr(A, 4), vr(B, 8), IDX)
    a('L_att:')
    a('s_sub_u32 s%d, s%d, %d\ns_lshr_b32 s%d, s%d, 4', sTASK, sTASK, N_KV + N_Q, sH, sTASK)
    a('s_add_u32 s%d, s6, %d\ns_addc_u32 s%d, s7, 0', sFLG, F_AKV * 128, sFLG + 1)
    wait_flag(a, sFLG, str(N_KV), 12)
    flag_addr(a, sFLG, sH, F_AQ)
    wait_flag(a, sFLG, '5', 13)
    a('s_barrier')
    a.vq = []; a.lq = []
    a('s_lshl_b32 s%d, s%d, 2\ns_add_u32 s%d, s%d, s%d\ns_mul_i32 s%d, s%d, 5120', sT0, sTASK, sT0, sT0, S_W, sT0, sT0)
    a('s_add_u32 s%d, s%d, %d\ns_add_u32 s%d, s6, s%d\ns_addc_u32 s%d, s7, 0', sT1, sT0, AQ, sP2, sT1, sP2 + 1)
    a('s_add_u32 s%d, s%d, %d\ns_add_u32 s%d, s6, s%d\ns_addc_u32 s%d, s7, 0', sT1, sT0, AO, sOUT, sT1, sOUT + 1)
    a('v_and_b32 v%d, 31, v%d\nv_mul_u32_u24 v%d, 40, v%d\nv_lshrrev_b32 v%d, 5, v%d\nv_lshl_add_u32 v%d, v%d, 4, v%d\nv_lshl_add_u32 v%d, v%d, 3, v%d', vA, vLane, vA, vA, vB, vLane, vQ, vB, vA, vOut, vB, vA)
    a('v_mov_b32 v%d, 0xdddd', IDX)
    a('s_mov_b32 s%d, 0x%x\ns_mov_b32 s%d, 0x%x', sLO, f2u(2.0 ** -60), sHI, f2u(2.0 ** 60) - f2u(2.0 ** -60))
    for j in range(4):
        for r in range(4, 8, 2): a('v_mov_b64 %s, 0', vr(Q + 8 * j + r, 2))
    for j in range(4):
        for r in (0, 2): a.vm('q', 'global_load_dwordx2 %s, v%d, s[%d:%d] offset:%d sc1', vr(Q + 8 * j + r, 2), vQ, sP2, sP2 + 1, 1280 * j + 4 * r)
    a('s_mov_b32 exec_hi, 0')
    for j in range(4): a.vm('q', 'global_load_dwordx2 %s, v%d, s[%d:%d] offset:%d sc1', vr(Q + 8 * j + 4, 2), vQ, sP2, sP2 + 1, 1280 * j + 32)
    a('s_mov_b64 exec, -1')
    a('s_add_u32 s%d, s6, %d\ns_addc_u32 s%d, s7, 0', sP3, AKV, sP3 + 1)
    def ldkv(buf):
        f = [(lambda i=i: a.vm(('kv', buf, i >> 1), 'global_load_dwordx4 %s, v%d, s[%d:%d] offset:%d', vr(KV + 16 * buf + 4 * i, 4), vL16, sP3, sP3 + 1, 1024 * i)) for i in range(4)]
        return f + ops(a, 's_add_u32 s%d, s%d, 4096\ns_addc_u32 s%d, s%d, 0', sP3, sP3, sP3 + 1, sP3 + 1)
    for buf in range(3):
        for f in ldkv(buf): f()
    for r in range(O, O + 64, 2): a('v_mov_b64 %s, 0', vr(r, 2))
    for r in range(S + 56, S + 64, 2): a('v_mov_b64 %s, 0', vr(r, 2))
    a('v_mov_b64 %s, 0\nv_mov_b64 %s, 0', vr(KV + 48 + 12, 2), vr(KV + 48 + 14, 2))
    a.wv('q', ('kv', 0, 0))
    for j in range(2): mf(S + 16 * j, KV, Q + 8 * j); mf(S + 16 * j, KV + 4, Q + 8 * j + 4, S + 16 * j)
    a('s_mov_b32 s%d, 0\ns_nop 9', sCNT)
    a('L_att_loop:')
    vq0 = list(a.vq)
    W = Weave()
    for c in range(4):
        kv = KV + 16 * c; kvp = KV + 16 * ((c - 1) % 4); kvn = KV + 16 * ((c + 1) % 4)
        for j in range(4):
            s = S + 16 * j; jp = (j - 1) % 4; j2 = (j + 2) % 4
            e = lambda i: a('v_exp_f32 v%d, v%d', s + i, s + i)
            e(0); e(1)
            sm(O + 16 * jp, (kvp if j == 0 else kv) + 12, S + 16 * jp + 8)
            if j == 0: W.add(ldkv((c + 3) % 4))
            W.go(1)
            for i in range(2, 6): e(i)
            if j == 2: a.wv(('kv', (c + 1) % 4, 0))
            kk = kvn if j >= 2 else kv
            mf(S + 16 * j2, kk, Q + 8 * j2); W.go(1)
            for i in range(6, 10): e(i)
            mf(S + 16 * j2, kk + 4, Q + 8 * j2 + 4, S + 16 * j2); W.go(1)
            for i in range(10, 14): e(i)
            if j == 0: a.wv(('kv', c, 1))
            sm(O + 16 * j, kv + 8, s); W.go(1)
            e(14); e(15)
        W.flush()
    assert len(a.vq) == len(vq0) or True
    a('s_add_u32 s%d, s%d, 1\ns_cmp_lt_u32 s%d, 16\ns_cbranch_scc1 L_att_loop', sCNT, sCNT, sCNT)
    sm(O + 48, KV + 48 + 12, S + 48 + 8)
    a('s_waitcnt vmcnt(0)'); a.vq = []
    a('s_mov_b32 s%d, 0\ns_mov_b32 s%d, -1', sMASK, sMASK + 1)
    a('s_mov_b64 s[%d:%d], 0', sMASK + 2, sMASK + 3)
    for j in range(4):
        a('v_cndmask_b32 v%d, v%d, v%d, s[%d:%d]', E + j, O + 16 * j + 12, O + 16 * j + 8, sMASK, sMASK + 1)
        a('v_subrev_u32 v%d, s%d, v%d\nv_cmp_lt_u32 vcc, s%d, v%d\ns_or_b64 s[%d:%d], s[%d:%d], vcc', vA, sLO, E + j, sHI, vA, sMASK + 2, sMASK + 3, sMASK + 2, sMASK + 3)
    a('s_cbranch_scc1 L_att_fb')
    a('L_att_fin:')
    for j in range(4):
        o = O + 16 * j
        a('v_cndmask_b32 v%d, v%d, v%d, s[%d:%d]\nv_rcp_f32 v%d, v%d', E, o + 12, o + 8, sMASK, sMASK + 1, E, E)
        for r in range(0, 12, 2): a('v_pk_mul_f32 %s, %s, %s op_sel_hi:[1,0]', vr(o + r, 2), vr(o + r, 2), vr(E, 2))
        for r in range(6): a('v_cvt_pk_bf16_f32 v%d, v%d, v%d', S + 8 * j + r, o + 2 * r, o + 2 * r + 1)
        for r in range(2): a('global_store_dwordx2 v%d, %s, s[%d:%d] offset:%d sc1', vOut, vr(S + 8 * j + 2 * r, 2), sOUT, sOUT + 1, 1280 * j + 16 * r)
    a('s_mov_b32 exec_hi, 0')
    for j in range(4): a('global_store_dwordx2 v%d, %s, s[%d:%d] offset:%d sc1', vOut, vr(S + 8 * j + 4, 2), sOUT, sOUT + 1, 1280 * j + 32)
    a('s_mov_b64 exec, -1')
    flag_addr(a, sFLG, sH, F_ATT)
    a('s_waitcnt vmcnt(0)\ns_barrier')
    signal(a, sFLG)
    a('s_branch L_queue')
    a('L_att_fb:')
    M = E + 4
    for j in range(4): a('v_mov_b32 v%d, 0xff800000', M + j)
    for ps in range(2):
        a('s_add_u32 s%d, s6, %d\ns_addc_u32 s%d, s7, 0\ns_mov_b32 s%d, 0', sP3, AKV, sP3 + 1, sCNT)
        if ps:
            for r in range(O, O + 64, 2): a('v_mov_b64 %s, 0', vr(r, 2))
        a('L_att_fb%d:' % ps)
        for f in ldkv(0): f()
        a('s_waitcnt vmcnt(0)'); a.vq = []
        for j in range(4):
            s = S + 16 * j
            mf(s, KV, Q + 8 * j); mf(s, KV + 4, Q + 8 * j + 4, s)
        for j in range(4):
            s = S + 16 * j
            if ps == 0:
                for r in range(0, 16, 2): a('v_max3_f32 v%d, v%d, v%d, v%d', M + j, M + j, s + r, s + r + 1)
            else:
                for r in range(16): a('v_sub_f32 v%d, v%d, v%d', s + r, s + r, M + j)
                for r in range(16): a('v_exp_f32 v%d, v%d', s + r, s + r)
                sm(O + 16 * j, KV + 8, s); sm(O + 16 * j, KV + 12, s + 8)
        a('s_add_u32 s%d, s%d, 1\ns_cmp_lt_u32 s%d, 64\ns_cbranch_scc1 L_att_fb%d', sCNT, sCNT, sCNT, ps)
        if ps == 0:
            for j in range(4): a('v_mov_b32 v%d, v%d\nv_permlane32_swap_b32 v%d, v%d\nv_max_f32 v%d, v%d, v%d', E, M + j, M + j, E, M + j, M + j, E)
    a('s_branch L_att_fin')
```

```python
from asmgen import *
from common import *

def spin_guard(a, cnt, code):
    a('s_sub_u32 s%d, s%d, 1', cnt, cnt)
    a('s_cbranch_scc1 L_bail%d', code)

def prologue(a):
    a('s_cmp_ge_u32 s2, 256\ns_cbranch_scc1 L_end')
    a('s_load_dwordx4 s[8:11], s[0:1], %d', KA_DBG)
    a('v_lshrrev_b32 v1, 6, v0\nv_readfirstlane_b32 s%d, v1', S_W)
    a('s_getreg_b32 s12, hwreg(HW_REG_XCC_ID, 0, 4)')
    a('s_waitcnt lgkmcnt(0)')
    a('s_add_u32 s6, s10, 0x3fffff\ns_addc_u32 s7, s11, 0\ns_and_b32 s6, s6, 0xffc00000')
    a('v_mov_b32 v2, 0')
    a('s_cmp_lg_u32 s%d, 0\ns_cbranch_scc1 L_role_wait', S_W)
    a('s_lshl_b32 s13, s2, 8\nv_lshl_add_u32 v1, v0, 2, s13')
    a('global_store_dword v1, v2, s[6:7] sc1')
    a('s_lshl_b32 s13, s12, 2\nv_mov_b32 v4, s13\nv_mov_b32 v3, 1\nv_lshlrev_b32 v1, 2, v0')
    a('s_waitcnt vmcnt(0)')
    a('s_mov_b64 exec, 1\nglobal_atomic_add v5, v4, v3, s[8:9] sc0\ns_waitcnt vmcnt(0)')
    a('v_readfirstlane_b32 s14, v5')
    a('s_mov_b64 exec, 0xffff\ns_mov_b32 s15, %d', SPIN)
    a('L_arr:')
    a('global_load_dword v5, v1, s[8:9] sc1')
    spin_guard(a, 15, 1)
    a('s_waitcnt vmcnt(0)')
    a('v_mov_b32 v6, v5')
    for sh in (1, 2, 4, 8):
        a('v_add_u32_dpp v6, v6, v6 row_shr:%d row_mask:0xf bank_mask:0xf bound_ctrl:0', sh)
    a('v_readlane_b32 s16, v6, 15')
    a('s_cmp_lt_u32 s16, 256\ns_cbranch_scc1 L_arr')
    a('v_readlane_b32 s16, v6, s12\nv_readlane_b32 s17, v5, s12\nv_readlane_b32 s18, v5, 0\nv_readlane_b32 s19, v5, 1')
    a('s_sub_u32 s16, s16, s17\ns_add_u32 s16, s16, s14')
    a('s_xor_b32 s18, s18, 32\ns_xor_b32 s19, s19, 32\ns_or_b32 s18, s18, s19\ns_cmp_eq_u32 s18, 0\ns_cselect_b32 s18, 0x10000, 0\ns_or_b32 s16, s16, s18')
    a('v_mov_b32 v5, s16\nds_write_b32 v2, v5\ns_waitcnt lgkmcnt(0)\ns_mov_b64 exec, -1')
    a('L_role_wait:\ns_barrier\nds_read_b32 v5, v2\ns_waitcnt lgkmcnt(0)\nv_readfirstlane_b32 s16, v5\ns_barrier')
    a('s_and_b32 s%d, s16, 0xffff\ns_lshr_b32 s%d, s16, 16', S_ROLE, S_FAST)

def probe_parity(a):
    a('s_mov_b64 exec, 1\nv_mov_b32 v2, 0')
    a('s_add_u32 s20, s6, %d\ns_addc_u32 s21, s7, 0', PROBE)
    a('s_mov_b32 s22, -1\ns_mov_b32 s23, -1')
    for i in range(4):
        for p in (0, 1):
            a('v_mov_b32 v1, %d', i * 16384 + p * 8192 + i * 1024)
            a('global_store_dword v1, v2, s[20:21] sc1\ns_waitcnt vmcnt(0)')
            a('s_memtime s[24:25]\ns_waitcnt lgkmcnt(0)')
            a('global_load_dword v3, v1, s[20:21] sc1\ns_waitcnt vmcnt(0)')
            a('s_memtime s[26:27]\ns_waitcnt lgkmcnt(0)')
            a('s_sub_u32 s24, s26, s24\ns_min_u32 s%d, s%d, s24', 22 + p, 22 + p)
    a('s_cmp_lt_u32 s23, s22\ns_cselect_b32 s22, 2, 1')
    a('v_mov_b32 v1, %d\nv_mov_b32 v2, s22\nglobal_store_dword v1, v2, s[8:9] sc1\ns_waitcnt vmcnt(0)', D_PAR * 4)
    a('s_mov_b64 exec, -1')

def get_parity(a, vt=1, vt2=2, st=15):
    L = a.label('L_par')
    a('v_mov_b32 v%d, %d\ns_mov_b32 s%d, %d', vt, D_PAR * 4, st, SPIN)
    a(L + ':')
    a('global_load_dword v%d, v%d, s[8:9] sc1', vt2, vt)
    spin_guard(a, st, 2)
    a('s_waitcnt vmcnt(0)\nv_readfirstlane_b32 s%d, v%d\ns_cmp_eq_u32 s%d, 0\ns_cbranch_scc1 %s', S_PAR, vt2, S_PAR, L)
    a('s_sub_u32 s%d, s%d, 1', S_PAR, S_PAR)

def epilogue(a, ncodes=16):
    for c in range(1, ncodes):
        a('L_bail%d:\ns_mov_b32 s12, %d\ns_branch L_bail', c, c)
    a('L_bail:\ns_mov_b64 exec, 1\nv_mov_b32 v2, s12\nv_mov_b32 v1, %d\nglobal_store_dword v1, v2, s[8:9] sc1\ns_waitcnt vmcnt(0)', D_ERR * 4)
    a('L_end:\ns_endpgm')
```

```python
import hazard
class Asm:
    def __init__(self):
        self.lines = []
        self.nlabel = 0
        self.lq = []
        self.vq = []
    def __call__(self, s, *a):
        if a:
            s = s % a
        for ln in s.split('\n'):
            ln = ln.strip()
            if ln:
                self.lines.append(('' if ln.endswith(':') else '    ') + ln)
    def label(self, base='L'):
        self.nlabel += 1
        return '%s_%d' % (base, self.nlabel)
    def ds(self, tag, s, *a):
        self(s, *a); self.lq.append(tag)
    def wl(self, *tags):
        idx = [i for i, t in enumerate(self.lq) if t in tags]
        if not idx: return
        n = len(self.lq) - 1 - max(idx)
        self('s_waitcnt lgkmcnt(%d)' % min(n, 15))
        self.lq = self.lq[len(self.lq) - min(n, 15):] if n else []
    def wl0(self):
        self('s_waitcnt lgkmcnt(0)'); self.lq = []
    def vm(self, tag, s, *a):
        self(s, *a); self.vq.append(tag)
    def wv(self, *tags):
        idx = [i for i, t in enumerate(self.vq) if t in tags]
        if not idx: return
        n = len(self.vq) - 1 - max(idx)
        assert n <= 63
        self('s_waitcnt vmcnt(%d)' % n)
        self.vq = self.vq[len(self.vq) - n:] if n else []
    def wv0(self):
        self('s_waitcnt vmcnt(0)'); self.vq = []
    def text(self, fix=False):
        lines = hazard.fix(self.lines) if fix else self.lines
        return '\n'.join(lines) + '\n'

def vr(a, n=1):
    return 'v%d' % a if n == 1 else 'v[%d:%d]' % (a, a + n - 1)
def ar(a, n=1):
    return 'a%d' % a if n == 1 else 'a[%d:%d]' % (a, a + n - 1)
def sr(a, n=1):
    return 's%d' % a if n == 1 else 's[%d:%d]' % (a, a + n - 1)
def xr(a, n=1):
    if a < 256:
        assert a + n <= 256
        return vr(a, n)
    assert a + n <= 512
    return ar(a - 256, n)

def kernel_wrap(name, body, launch, vgpr=256, sgpr=102, accum=256, header=''):
    s = header + launch + '\n'
    s += '.amdgcn_target "amdgcn-amd-amdhsa--gfx950"\n.text\n.globl %s\n.p2align 8\n.type %s,@function\n%s:\n' % (name, name, name)
    s += body
    s += '.section .rodata,"a"\n.p2align 6\n.amdhsa_kernel %s\n' % name
    s += '  .amdhsa_next_free_vgpr %d\n  .amdhsa_next_free_sgpr %d\n  .amdhsa_accum_offset %d\n' % (vgpr, sgpr, accum)
    s += '  .amdhsa_group_segment_fixed_size 0\n  .amdhsa_kernarg_size 120\n  .amdhsa_user_sgpr_count 2\n  .amdhsa_user_sgpr_kernarg_segment_ptr 1\n  .amdhsa_system_sgpr_workgroup_id_x 1\n'
    s += '.end_amdhsa_kernel\n'
    return s
```

```python
import re
TRANS = ('v_exp_f32','v_log_f32','v_rcp_f32','v_rsq_f32','v_sqrt_f32','v_sin_f32','v_cos_f32','v_rcp_iflag_f32')
def regs(tok):
    tok = tok.strip()
    if tok.startswith('-'): tok = tok[1:]
    if tok.startswith('abs(') and tok.endswith(')'): tok = tok[4:-1]
    if tok.startswith('|') and tok.endswith('|'): tok = tok[1:-1]
    m = re.fullmatch(r'([vas])(\d+)', tok)
    if m: return {(m.group(1), int(m.group(2)))}
    m = re.fullmatch(r'([vas])\[(\d+):(\d+)\]', tok)
    if m: return {(m.group(1), i) for i in range(int(m.group(2)), int(m.group(3)) + 1)}
    if tok == 'vcc': return {('s', 'vcc_lo'), ('s', 'vcc_hi')}
    if tok in ('vcc_lo', 'vcc_hi', 'm0'): return {('s', tok)}
    if tok == 'exec': return {('s', 'exec_lo'), ('s', 'exec_hi')}
    if tok in ('exec_lo', 'exec_hi'): return {('s', tok)}
    return set()
VCC = regs('vcc'); EXEC = regs('exec')
class I:
    def __init__(self, text):
        self.text = text
        t = text.split(';')[0].strip()
        self.label = t[:-1] if t.endswith(':') else None
        self.op = ''; self.rd = set(); self.wr = set(); self.cls = 'other'; self.ws = 1
        self.srcA = self.srcB = self.srcC = set(); self.passes = 0; self.sdata = set(); self.target = None
        self.dpp = False; self.lanesel = set(); self.carryin = set(); self.isdir = False
        if self.label or not t or t.startswith('.'):
            self.ws = 0; self.isdir = True; return
        sp = t.split(None, 1); op = self.op = sp[0]
        rest = sp[1] if len(sp) > 1 else ''
        rest = re.sub(r'(quad_perm|op_sel|op_sel_hi|neg_lo|neg_hi):\[[^\]]*\]', r'\1', rest)
        rest = re.sub(r'hwreg\([^)]*\)', 'hwreg', rest)
        ops = [x.strip() for x in rest.split(',')] if rest else []
        mods = ''
        if ops:
            last = ops[-1].split(None, 1)
            if len(last) > 1 and not ops[-1].startswith('hwreg') and not op.startswith('s_waitcnt'):
                ops[-1] = last[0]; mods = last[1]
        R = [regs(x) for x in ops]
        U = lambda l: set().union(*l) if l else set()
        if op == 's_nop':
            self.ws = int(ops[0], 0) + 1; self.cls = 'nop'
        elif op.startswith('s_cbranch') or op == 's_branch':
            self.cls = 'branch'; self.target = ops[0]
            if 'vcc' in op: self.rd = set(VCC)
            if 'exec' in op: self.rd = set(EXEC)
        elif op.startswith('v_mfma') or op.startswith('v_smfmac'):
            self.cls = 'mfma'
            self.passes = 8 if '32x32' in op else 4
            self.wr = R[0]; self.srcA = R[1]; self.srcB = R[2]
            if op.startswith('v_smfmac'):
                self.srcC = R[0]; self.srcA = R[1] | R[3]
            else:
                self.srcC = R[3]
            self.rd = self.srcA | self.srcB | self.srcC
        elif op.startswith('v_'):
            self.cls = 'valu'
            base = re.sub(r'_(e32|e64|dpp|sdwa)$', '', op)
            self.base = base
            self.dpp = op.endswith('_dpp') or 'row_' in mods or 'quad_perm' in mods
            if base.startswith('v_cmpx'):
                self.wr = R[0] | EXEC; self.rd = U(R[1:])
            elif base.startswith('v_permlane'):
                self.wr = R[0] | R[1]; self.rd = R[0] | R[1]
            elif base in ('v_add_co_u32','v_sub_co_u32','v_subrev_co_u32'):
                self.wr = R[0] | R[1]; self.rd = U(R[2:])
            elif base in ('v_addc_co_u32','v_subb_co_u32'):
                self.wr = R[0] | R[1]; self.rd = U(R[2:]); self.carryin = R[4]
            elif base == 'v_nop':
                pass
            else:
                self.wr = R[0]; self.rd = U(R[1:])
                if base.startswith('v_fmac') or base.startswith('v_pk_fmac') or self.dpp or base.startswith('v_writelane') or base.startswith('v_dot2c'):
                    self.rd |= R[0]
                if base in ('v_readlane_b32', 'v_writelane_b32'): self.lanesel = R[2]
                if base == 'v_cndmask_b32' and len(R) == 3: self.rd |= VCC
        elif op.startswith('ds_'):
            self.cls = 'ds'
            if op.startswith('ds_read') or op.startswith('ds_bpermute') or op.startswith('ds_permute') or op.startswith('ds_swizzle') or '_rtn' in op:
                self.wr = R[0]; self.rd = U(R[1:])
            else:
                self.rd = U(R)
        elif op.startswith('global_') or op.startswith('buffer_'):
            self.cls = 'vmem'
            islds = ('lds' in mods.split()) or '_lds_' in op
            if op in ('buffer_inv', 'buffer_wbl2'):
                pass
            elif islds:
                self.rd = U(R) | {('s', 'm0')}; self.ldsdma = True
            elif '_load' in op:
                self.wr = R[0]; self.rd = U(R[1:])
            elif '_atomic' in op and 'sc0' in mods.split():
                self.wr = R[0]; self.rd = U(R[1:]) if op.startswith('global_') else U(R)
            else:
                self.rd = U(R)
                if op.endswith('x3') or op.endswith('x4'):
                    self.sdata = R[1] if op.startswith('global_') else R[0]
        elif op.startswith('s_'):
            self.cls = 'salu'
            if op.startswith('s_cmp') or op.startswith('s_waitcnt') or op in ('s_barrier','s_endpgm','s_setprio','s_sleep','s_bitcmp0_b32','s_bitcmp1_b32'):
                self.rd = U(R)
            elif op.startswith('s_load') or op.startswith('s_memtime') or op.startswith('s_memrealtime') or op.startswith('s_atomic'):
                self.cls = 'smem'; self.wr = R[0]; self.rd = U(R[1:])
            else:
                self.wr = R[0]; self.rd = U(R[1:])
                if 'saveexec' in op: self.wr |= EXEC; self.rd |= EXEC
                if op in ('s_addk_i32', 's_mulk_i32'): self.rd |= R[0]
        else:
            raise ValueError('unknown instr ' + text)
def vec(s): return {r for r in s if r[0] in 'va'}
def sca(s): return {r for r in s if r[0] == 's'}
def need(p, c):
    n = 0
    if p.cls == 'valu':
        pv, ps = vec(p.wr), sca(p.wr)
        if c.cls == 'mfma' and pv & c.rd: n = max(n, 2)
        if c.cls == 'mfma' and ps & EXEC: n = max(n, 4)
        if c.cls == 'valu':
            if c.dpp and pv & c.rd: n = max(n, 2)
            if c.dpp and ps & EXEC: n = max(n, 5)
            if c.base.startswith('v_permlane'):
                if pv & c.rd: n = max(n, 2)
                if ps & EXEC: n = max(n, 4)
            if c.base in ('v_readlane_b32', 'v_readfirstlane_b32') and pv & c.rd: n = max(n, 1)
            if c.base in ('v_readlane_b32', 'v_readfirstlane_b32', 'v_writelane_b32') and ps & EXEC: n = max(n, 4)
            if ps & c.lanesel: n = max(n, 4)
            if ps & sca(c.rd): n = max(n, 2)
            if p.base in TRANS and c.base not in TRANS and pv & c.rd: n = max(n, 1)
        if c.cls == 'vmem' and ps & c.rd: n = max(n, 5)
        if c.cls in ('salu', 'smem', 'branch') and ps & c.rd: n = max(n, 1)
    if p.cls == 'salu':
        if ('s', 'm0') in p.wr and c.cls == 'vmem' and ('s', 'm0') in c.rd: n = max(n, 1)
    if p.cls == 'vmem' and p.sdata:
        if c.cls == 'valu' and p.sdata & c.wr: n = max(n, 2)
        elif p.sdata & c.wr: n = max(n, 1)
    if p.cls == 'mfma':
        big = p.passes == 8
        if c.cls == 'mfma':
            if p.wr & (c.srcA | c.srcB): n = max(n, 12 if big else 8)
            if p.wr & c.srcC:
                if not (p.wr == c.srcC and p.op == c.op): n = max(n, 10 if big else 6)
            elif p.wr & c.wr and not (p.wr == c.wr and p.op == c.op): n = max(n, 10 if big else 6)
        elif c.cls in ('valu', 'vmem', 'ds'):
            if p.wr & (c.rd | c.wr): n = max(n, 12 if big else 8)
            if c.cls == 'valu' and p.srcC & c.wr: n = max(n, 7 if big else 3)
    return n
MAXW = 13
def fix(lines):
    ins = [I(l) for l in lines]
    def check(hist, c):
        d = 0; worst = 0
        for p in reversed(hist):
            if d >= MAXW: break
            if not p.isdir:
                worst = max(worst, need(p, c) - d)
            d += p.ws
        return worst
    def linear(ins):
        out = []
        for c in ins:
            if not c.isdir:
                h = []
                for p in reversed(out):
                    if p.op in ('s_branch', 's_endpgm'): break
                    h.append(p)
                    if len(h) > 40: break
                h.reverse()
                k = check(h, c)
                if k > 0: out.append(I('    s_nop %d' % (k - 1)))
            out.append(c)
        return out
    ins = linear(ins)
    for it in range(20):
        pos = {c.label: i for i, c in enumerate(ins) if c.label}
        add = {}
        for i, c in enumerate(ins):
            if c.cls == 'branch' and c.target in pos:
                h = []
                for p in reversed(ins[max(0, i - 40):i + 1]):
                    if p is not c and p.op in ('s_branch', 's_endpgm'): break
                    h.append(p)
                h.reverse()
                j = pos[c.target] + 1; d = 0
                while j < len(ins) and d < MAXW:
                    q = ins[j]
                    if not q.isdir:
                        k = check(h, q)
                        if k > 0:
                            add[pos[c.target]] = max(add.get(pos[c.target], 0), k); break
                        if q.op in ('s_branch', 's_endpgm'): break
                        h.append(q); d += q.ws
                    j += 1
        if not add: break
        out = []
        for i, c in enumerate(ins):
            out.append(c)
            if i in add: out.append(I('    s_nop %d' % (add[i] - 1)))
        ins = out
    return [c.text for c in ins]
```

```python
import sys, re
sys.path.insert(0, 'lib'); sys.path.insert(0, 'work')
from asmgen import *
from common import *
import g_pro, g_chain, g_bulk, g_parta
NAME = 'concat_heads__grouped_kv_mqa__memory_aug_recurrent_mem_tr__prompt_kernel'
def build(opt):
    a = Asm()
    if opt.get('tm'): a('s_memrealtime s[90:91]')
    g_pro.prologue(a, opt)
    if opt.get('forceslow'): a('s_mov_b32 s%d, 0', S_FAST)
    a('s_cmp_lt_u32 s%d, 64\ns_cbranch_scc1 L_chain', S_ROLE)
    a('s_cmp_lg_u32 s%d, 64\ns_cbranch_scc1 L_noprobe\ns_cmp_lg_u32 s%d, 0\ns_cbranch_scc1 L_noprobe', S_ROLE, S_W)
    g_pro.probe_parity(a)
    a('L_noprobe:')
    if opt.get('nokv'):
        a('s_branch L_end')
    else:
        B = g_bulk
        B.lane_regs(a)
        if opt.get('noA'): a('s_mov_b32 s%d, 0', B.sTASK)
        a('s_cmp_lt_u32 s%d, 96\ns_cbranch_scc1 L_r_k\ns_cmp_lt_u32 s%d, 128\ns_cbranch_scc1 L_r_v\ns_cmp_lt_u32 s%d, 160\ns_cbranch_scc1 L_r_qa', S_ROLE, S_ROLE, S_ROLE)
        a('s_cmp_ge_u32 s%d, 224\ns_cbranch_scc1 L_queue', S_ROLE)
        a('s_sub_u32 s%d, s%d, 160\ns_lshr_b32 s%d, s%d, 5\ns_and_b32 s%d, s%d, 31\ns_cmp_lt_u32 s%d, 20\ns_cbranch_scc1 L_orole\ns_branch L_queue', B.sT0, S_ROLE, B.sSEG, B.sT0, B.sH, B.sT0, B.sH)
        a('L_r_k:'); B.b_role(a, B.K_K, KA_WK, 64)
        a('L_r_v:'); B.b_role(a, B.K_V, KA_WV, 96)
        a('L_r_qa:'); B.b_role(a, B.K_QA, KA_WQ, 128)
        B.g_load(a)
        B.kv_loops(a, opt)
        B.qa_role(a, opt)
        B.o_role(a, opt, 2)
        if opt.get('noA'):
            a('L_queue:\nL_aq:\nL_ao:\nL_akv:\ns_branch L_done')
        else:
            g_parta.queue(a)
            g_parta.a_loops(a)
            g_parta.att(a, opt)
        a('L_done:')
        g_pro.mark(a, opt, 8, 2, 3)
        if opt.get('tm'):
            a('s_memrealtime s[94:95]\ns_waitcnt lgkmcnt(0)\ns_lshl_b32 s12, s%d, 4\ns_add_u32 s12, s12, %d\nv_mov_b32 v0, s12', S_ROLE, STAMP + 0x40000)
            a('v_mov_b32 v14, s90\nv_mov_b32 v15, s90\nv_mov_b32 v16, s94\nv_mov_b32 v17, 0\nglobal_store_dwordx4 v0, v[14:17], s[6:7]\ns_waitcnt vmcnt(0)')
        a('s_branch L_end')
    g_pro.epilogue(a)
    a('L_chain:')
    g_chain.chain(a, opt)
    if opt.get('nocomm'):
        out = []; inl = False; ph = -1
        for l in a.lines:
            if l.startswith('L_var0:'): inl = True
            if l.startswith('L_chain_end:'): inl = False
            t = l.strip()
            if t.startswith('; PH'): ph = int(t[5:])
            if t.startswith('L_var'): ph = -1
            if inl:
                nc = opt['nocomm'] + opt.get('ph', {}).get(ph, '')
                if 'w' in nc and t.startswith('s_waitcnt'): continue
                if 's' in nc and re.match(r's_(add|addc|xor|and|lshl|lshr|mul|bfe|mov|min)', t) and not t.startswith('s_add_u32 s14, s14, 1'): continue
                if 'g' in nc and t.startswith('global_'): continue
                if 'D' in nc and t.startswith('global_load_lds'): continue
                if 'g' in nc and t.startswith('s_cbranch_vccnz'): continue
                if 'm' in nc and t.startswith('v_smfmac'): continue
                if 'd' in nc and t.startswith('v_mfma'): continue
                if 'l' in nc and t.startswith('ds_'): continue
                if 'b' in nc and t.startswith('s_barrier'): continue
                if 'v' in nc and re.match(r'v_(?!smfmac|mfma)', t): continue
            out.append(l)
        a.lines = out
    hdr = ''.join(l for l in open('cdna_kernels/' + NAME[:-7] + '.s.ref').readlines()[:18]) if opt.get('final') else ''
    return kernel_wrap(NAME, a.text(fix=True), '; @launch grid=(256,1,1) block=(256,1,1) lds=163840', vgpr=512, sgpr=102, accum=256, header=hdr)
if __name__ == '__main__':
    opt = eval(sys.argv[2]) if len(sys.argv) > 2 else {}
    open(sys.argv[1], 'w').write(build(opt))
```

```python
from asmgen import *
from common import *
from g_pro import spin_guard, get_parity, mark
import struct
def f2u(x): return struct.unpack('<I', struct.pack('<f', x))[0]
vIdx, vL16, vT16, vT16B, vT16C, vT4, vPA, vPB, vRd, vPub, vTw, vTr, vOw = range(1, 14)
ACCQ, ACCK, ACCV, MS, WS, PO = 14, 22, 30, 38, 50, 66
WQ, WK0, WK1, WO, WVR = 256, 256 + 160, 72, 136, 216
def wq(b, H): return WQ + (2 * b + H) * 8
def wk(b, H):
    i = 2 * b + H
    return WK0 + i * 8 if i < 12 else WK1 + (i - 12) * 8
def wo(t, kb): return WO + (2 * t + kb) * 8
def wv_lds(b, H):
    if b < 5: return 2 * b + H
    return 10 + (b - 5) if H == 0 else None
def wv_reg(b): return WVR + (b - 5) * 8
L_M0, L_M1, L_KX, L_VX, L_BSEL, L_WV = 0, 5120, 10240, 18432, 26624, 32768
L_T, L_O = L_M0, L_M1
L_KX2 = 155648
def wv_addr(op, half):
    off = L_WV + op * 8192 + half * 4096
    if off < 65536: return vT16, off
    if off < 131072: return vT16B, off - 65536
    return vT16C, off - 131072
sME, sH, sU, sSTEP, sTAG, sCNT, sT0, sT1, sRED = 11, 12, 13, 14, 15, 16, 17, 18, 19
sSRD = 20
sROW = 24
sPARTA, sPARTB, sMO, sMXW, sMXR, sMOZ, sMXZ, sNEXT, sCUR, sFLG, sSCALE = 24, 26, 28, 30, 32, 34, 36, 38, 40, 42, 44
sMOB, sMXB, sSEGB, sPB, sLO, sHI, sKVF = 46, 48, 50, 52, 54, 55, 56
sPM, sOM, sKXO, sW10, sNEXTV, sNEED, sODD, sONE = 58, 70, 20, 21, 22, 60, 88, 62
sPTR = 60
sST = 72

def smf(a, d, A, B): a('v_smfmac_f32_16x16x64_bf16 %s, %s, %s, v%d', vr(d, 4), vr(A, 4), xr(B, 8), vIdx)
def mf32(a, d, A, B, C=None): a('v_mfma_f32_16x16x32_bf16 %s, %s, %s, %s', vr(d, 4), xr(A, 4), xr(B, 4), '0' if C is None else vr(C, 4))
def mf16(a, d, A, B, C=None): a('v_mfma_f32_16x16x16_bf16 %s, %s, %s, %s', vr(d, 4), xr(A, 2), xr(B, 2), '0' if C is None else vr(C, 4))

def rowconst(p, e): return 32 * (p >> 2) + 8 * (p & 1) + 2 * ((p >> 1) & 1) + e

class Loader:
    RING = [14, 30, 46]
    TMP = 62
    def __init__(self, a): self.a = a; self.pend = []; self.n = 0
    def batch(self, voff, fin):
        a = self.a
        if len(self.pend) == len(self.RING): self.retire()
        z = self.RING[self.n % len(self.RING)]; tag = ('w', self.n); self.n += 1
        for p in range(8):
            for e in range(2):
                a.vm(tag, 'buffer_load_dword v%d, v%d, s[%d:%d], s%d offen', z + 2 * p + e, voff, sSRD, sSRD + 3, sROW + 2 * p + e)
        self.pend.append((tag, z, fin))
    def retire(self):
        tag, z, fin = self.pend.pop(0)
        self.a.wv(tag); fin(z)
    def drain(self):
        while self.pend: self.retire()

def put(a, dst, X, Y, sel):
    if dst < 256:
        a('v_perm_b32 v%d, v%d, v%d, %s', dst, Y, X, sel)
    else:
        t = Loader.TMP + (dst & 7)
        a('v_perm_b32 v%d, v%d, v%d, %s\nv_accvgpr_write_b32 a%d, v%d', t, Y, X, sel, dst - 256, t)

def set_srd(a, ptr, off_s, size):
    a('s_add_u32 s%d, s%d, s%d\ns_addc_u32 s%d, s%d, 0\ns_and_b32 s%d, s%d, 0xffff', sSRD, ptr, off_s, sSRD + 1, ptr + 1, sSRD + 1, sSRD + 1)
    a('s_sub_u32 s%d, %d, s%d\ns_mov_b32 s%d, 0x20000', sSRD + 2, size, off_s, sSRD + 3)

def setup(a, opt):
    a('s_lshr_b32 s%d, s%d, 5\ns_and_b32 s%d, s%d, 31', sME, S_ROLE, sH, S_ROLE)
    a('s_load_dwordx8 s[%d:%d], s[0:1], %d\ns_load_dwordx2 s[%d:%d], s[0:1], %d', sPTR, sPTR + 7, KA_MEM0, sPTR + 8, sPTR + 9, KA_WO)
    pM, pQ, pK, pV, pO = sPTR, sPTR + 2, sPTR + 4, sPTR + 6, sPTR + 8
    vLane, vN, vG, vA, vB = 70, 71, 0, 62, 63
    a('v_lshlrev_b32 v%d, 4, v0\nv_add_u32 v%d, 0x10000, v%d\nv_add_u32 v%d, 0x20000, v%d', vT16, vT16B, vT16, vT16C, vT16)
    a('v_lshlrev_b32 v%d, 2, v0\nv_add_u32 v%d, 0x1000, v%d', vT4, vT4, vT4)
    a('v_and_b32 v%d, 63, v0\nv_and_b32 v%d, 15, v0\nv_lshlrev_b32 v%d, 4, v%d', vLane, vN, vL16, vLane)
    a('v_bfe_u32 v%d, v0, 4, 2', vG)
    a('v_bfe_u32 v%d, v%d, 1, 1\nv_mul_u32_u24 v%d, 0xaaaa, v%d\nv_add_u32 v%d, 0x4444, v%d', vA, vLane, vA, vA, vIdx, vA)
    vRowG, vOffW, vOffB = 9, 10, 11
    a('v_lshrrev_b32 v%d, 1, v%d\nv_lshlrev_b32 v%d, 4, v%d\nv_and_b32 v%d, 1, v%d\nv_lshl_add_u32 v%d, v%d, 2, v%d', vA, vG, vA, vA, vB, vG, vRowG, vB, vA)
    a('s_lshl_b32 s%d, s%d, 6', sT0, S_W)
    a('v_lshlrev_b32 v%d, 13, v%d\nv_lshl_add_u32 v%d, v%d, 2, v%d\nv_add_u32 v%d, s%d, v%d', vA, vRowG, vA, vN, vA, vOffW, sT0, vA)
    for p in range(8):
        for e in range(2): a('s_mov_b32 s%d, %d', sROW + 2 * p + e, rowconst(p, e) * 8192)
    sSelLo, sSelHi, sMe5 = 44, 45, 46
    a('s_mov_b32 s%d, 0x05040100\ns_mov_b32 s%d, 0x07060302\ns_mul_i32 s%d, s%d, %d', sSelLo, sSelHi, sMe5, sME, 5 * 64 * 8192)
    a('s_lshl_b32 s%d, s%d, 8', sT1, sH)
    a('s_waitcnt lgkmcnt(0)')
    ld = Loader(a)
    lo, hi = 's%d' % sSelLo, 's%d' % sSelHi
    def blockoff(b):
        if b < 5: a('s_add_u32 s%d, s%d, %d', sT0, sMe5, b * 64 * 8192)
        else: a('s_sub_u32 s%d, %d, s%d', sT0, b * 64 * 8192, sMe5)
        a('v_add_u32 v%d, s%d, v%d', vOffB, sT0, vOffW)
    def fin_reg(ra, rb):
        def f(z):
            for p in range(8):
                put(a, ra + p, z + 2 * p, z + 2 * p + 1, lo); put(a, rb + p, z + 2 * p, z + 2 * p + 1, hi)
        return f
    def fin_v(b):
        def f(z):
            for H, sel in ((0, lo), (1, hi)):
                op = wv_lds(b, H)
                if op is None:
                    for p in range(8): put(a, wv_reg(b) + p, z + 2 * p, z + 2 * p + 1, sel)
                else:
                    a.wl0()
                    for p in range(8): put(a, Loader.TMP + p, z + 2 * p, z + 2 * p + 1, sel)
                    for half in range(2):
                        base, off = wv_addr(op, half)
                        a.ds('x', 'ds_write_b128 v%d, %s offset:%d', base, vr(Loader.TMP + 4 * half, 4), off)
        return f
    for ptr, home in ((pQ, wq), (pK, wk)):
        ld.drain() if False else None
        set_srd(a, ptr, sT1, 640 * 8192)
        for b in range(10):
            blockoff(b); ld.batch(vOffB, fin_reg(home(b, 0), home(b, 1)))
    set_srd(a, pV, sT1, 640 * 8192)
    for b in range(10):
        blockoff(b); ld.batch(vOffB, fin_v(b))
    for p in range(8):
        for e in range(2): a('s_mov_b32 s%d, %d', sROW + 2 * p + e, rowconst(p, e) * 1280)
    a('s_mul_i32 s%d, s%d, 163840\ns_mul_i32 s%d, s%d, 640\ns_add_u32 s%d, s%d, s%d', sT1, sH, sT0, sME, sT1, sT1, sT0)
    set_srd(a, pO, sT1, 4096 * 1280)
    vOffO, vSel5 = 12, 13
    a('v_mul_u32_u24 v%d, 1280, v%d', vRowG, vRowG)
    a('s_lshl_b32 s%d, s%d, 7\nv_lshl_add_u32 v%d, v%d, 2, v%d\nv_add_u32 v%d, s%d, v%d', sT0, S_W, vOffW, vN, vRowG, vOffW, sT0, vOffW)
    a('s_lshl_b32 s%d, s%d, 5\ns_add_u32 s%d, s%d, 512', sT0, S_W, sT0, sT0)
    a('v_lshrrev_b32 v%d, 1, v%d\nv_lshl_add_u32 v%d, v%d, 2, v%d\nv_add_u32 v%d, s%d, v%d', vOffO, vN, vOffO, vOffO, vRowG, vOffO, sT0, vOffO)
    a('v_and_b32 v%d, 1, v%d\nv_mul_u32_u24 v%d, 0x0202, v%d\nv_lshl_or_b32 v%d, v%d, 16, v%d\nv_add_u32 v%d, 0x05040100, v%d', vSel5, vN, vSel5, vSel5, vSel5, vSel5, vSel5, vSel5, vSel5)
    for P in range(2):
        for kb in range(2):
            a('v_add_u32 v%d, %d, v%d', vOffB, P * 64 + kb * 64 * 1280, vOffW)
            ld.batch(vOffB, fin_reg(wo(2 * P, kb), wo(2 * P + 1, kb)))
    def fin5(kb):
        def f(z):
            for p in range(8): put(a, wo(4, kb) + p, z + 2 * p, z + 2 * p + 1, 'v%d' % vSel5)
        return f
    for kb in range(2):
        a('v_add_u32 v%d, %d, v%d', vOffB, kb * 64 * 1280, vOffO)
        ld.batch(vOffB, fin5(kb))
    ld.drain(); a.wl0()
    mark(a, opt, 3, 14, 15)
    vH, vg1, vC = 64, 65, 66
    a('v_lshrrev_b32 v%d, 5, v%d\nv_and_b32 v%d, 1, v%d', vH, vLane, vg1, vG)
    a('s_lshl_b32 s%d, s%d, 15\ns_lshl_b32 s%d, s%d, 6\ns_add_u32 s%d, s%d, s%d', sT0, S_W, sT1, sH, sT0, sT0, sT1)
    a('v_lshrrev_b32 v%d, 3, v%d\nv_lshl_add_u32 v%d, v%d, 2, v%d\nv_lshlrev_b32 v%d, 11, v%d', vA, vN, vA, vA, vG, vA, vA)
    a('v_and_b32 v%d, 7, v%d\nv_lshl_add_u32 v%d, v%d, 3, v%d\nv_add_u32 v%d, s%d, v%d', vB, vN, vA, vB, vA, vPA, sT0, vA)
    a('s_lshl_b32 s%d, s%d, 13\ns_add_u32 s%d, s%d, s%d\ns_add_u32 s%d, s%d, 0x20000', sT0, S_W, sT0, sT0, sT1, sT0, sT0)
    a('v_lshlrev_b32 v%d, 11, v%d\nv_lshl_add_u32 v%d, v%d, 2, v%d\nv_add_u32 v%d, s%d, v%d', vA, vG, vA, vN, vA, vPB, sT0, vA)
    a('s_lshl_b32 s%d, s%d, 5\ns_add_u32 s%d, s%d, s%d\ns_cmp_lt_u32 s%d, 80\ns_cselect_b32 s%d, 1, 0\ns_cselect_b32 s%d, s%d, 0', sU, S_W, sU, sU, sH, sU, sRED, sU, sU)
    a('v_and_b32 v%d, 3, v%d\nv_lshl_add_u32 v%d, v%d, 2, v%d\nv_lshlrev_b32 v%d, 6, v%d', vA, vLane, vA, vG, vA, vA, vA)
    a('v_lshrrev_b32 v%d, 2, v%d\nv_lshl_add_u32 v%d, v%d, 4, v%d\ns_lshl_b32 s%d, s%d, 11\nv_add_u32 v%d, s%d, v%d', vB, vN, vA, vB, vA, sT0, sU, vRd, sT0, vA)
    vRu, vDu = 67, 68
    a('v_bfe_u32 v%d, v%d, 1, 1\nv_lshl_add_u32 v%d, v%d, 1, v%d', vA, vN, vRu, vH, vA)
    a('v_bfe_u32 v%d, v%d, 2, 1\nv_lshlrev_b32 v%d, 1, v%d\nv_lshl_add_u32 v%d, v%d, 2, v%d', vA, vN, vA, vA, vDu, vg1, vA)
    a('s_lshl_b32 s%d, s%d, 6\nv_lshlrev_b32 v%d, 1, v%d\nv_lshl_add_u32 v%d, v%d, 4, v%d\nv_add_u32 v%d, s%d, v%d', sT0, sU, vA, vDu, vA, vRu, vA, vPub, sT0, vA)
    a('s_lshl_b32 s%d, s%d, 6\nv_mul_u32_u24 v%d, 576, v%d\nv_lshl_add_u32 v%d, v%d, 2, v%d\nv_add_u32 v%d, s%d, v%d', sT0, S_W, vA, vG, vA, vN, vA, vTw, sT0, vA)
    a('v_lshrrev_b32 v%d, 2, v%d\nv_and_b32 v%d, 1, v%d\nv_lshl_add_u32 v%d, v%d, 1, v%d', vA, vN, vB, vN, vC, vA, vB)
    a('v_mul_u32_u24 v%d, 288, v%d\nv_lshl_add_u32 v%d, v%d, 4, v%d', vC, vC, vTr, vG, vC)
    a('s_lshl_b32 s%d, s%d, 9\nv_lshlrev_b32 v%d, 1, v%d\nv_add_u32 v%d, v%d, v%d\nv_lshl_add_u32 v%d, v%d, 1, v%d\nv_lshlrev_b32 v%d, 4, v%d', sT0, S_W, vA, vA, vA, vA, vg1, vA, vA, vB, vA, vA)
    a('v_lshl_add_u32 v%d, v%d, 8, v%d\nv_add_u32 v%d, s%d, v%d', vA, vH, vA, vOw, sT0, vA)
    a('v_and_b32 v%d, 12, v%d\nv_and_b32 v%d, 1, v%d\nv_lshl_add_u32 v%d, v%d, 1, v%d\nv_bfe_u32 v%d, v%d, 1, 1\nv_add_u32 v%d, v%d, v%d', vA, vN, vB, vN, vA, vB, vA, vB, vN, vA, vA, vB)
    a('s_cmp_eq_u32 s%d, 2\ns_cselect_b64 vcc, -1, 0\nv_cndmask_b32 v%d, v%d, v%d, vcc', S_W, vA, vN, vA)
    a('v_mov_b32 v%d, 0x3f80\nv_mov_b32 v%d, 0x3f800000', vB, vC)
    for r in range(4):
        a('v_cmp_eq_u32 vcc, %d, v%d\nv_cndmask_b32 v%d, 0, v%d, vcc', 2 * r, vA, 14 + r, vB)
        a('v_cmp_eq_u32 vcc, %d, v%d\nv_cndmask_b32 v%d, v%d, v%d, vcc', 2 * r + 1, vA, 14 + r, 14 + r, vC)
    a.ds('x', 'ds_write_b128 v%d, v[14:17] offset:%d', vT16, L_BSEL)
    if opt.get('par') is None: get_parity(a, 18, 19, sCNT)
    else: a('s_mov_b32 s%d, %d', S_PAR, opt['par'])
    a('s_mul_i32 s%d, s%d, %d\ns_add_u32 s%d, s%d, %d\ns_add_u32 s%d, s6, s%d\ns_addc_u32 s%d, s7, 0', sT0, sME, 2 * 163840, sT0, sT0, PART, sPB, sT0, sPB + 1)
    a('s_lshl_b32 s%d, s%d, 15\ns_add_u32 s%d, s%d, %d\ns_add_u32 s%d, s6, s%d\ns_addc_u32 s%d, s7, 0', sT0, sME, sT0, sT0, MO, sMOB, sT0, sMOB + 1)
    a('s_lshl_b32 s%d, s%d, 13\ns_add_u32 s%d, s%d, %d\ns_add_u32 s%d, s6, s%d\ns_addc_u32 s%d, s7, 0', sT0, S_PAR, sT0, sT0, MX, sMXB, sT0, sMXB + 1)
    a('s_lshl_b32 s%d, s%d, 15\ns_add_u32 s%d, s%d, %d\ns_add_u32 s%d, s6, s%d\ns_addc_u32 s%d, s7, 0', sT0, sH, sT0, sT0, SEG, sSEGB, sT0, sSEGB + 1)
    a('s_lshl_b32 s%d, s%d, 5\ns_add_u32 s%d, s%d, s%d\ns_add_u32 s%d, s%d, %d\ns_lshl_b32 s%d, s%d, 7\ns_add_u32 s%d, s6, s%d\ns_addc_u32 s%d, s7, 0', sT0, sME, sT0, sT0, sH, sT0, sT0, F_KM, sT0, sT0, sFLG, sT0, sFLG + 1)
    a('s_add_u32 s%d, s%d, %d\ns_lshl_b32 s%d, s%d, 7\ns_add_u32 s%d, s6, s%d\ns_addc_u32 s%d, s7, 0', sT0, sH, F_K, sT0, sT0, sKVF, sT0, sKVF + 1)
    c = f2u(128 ** -0.5 * 1.4426950408889634)
    a('s_mov_b32 s%d, 0x%x\ns_mov_b32 s%d, 0x%x', sSCALE, c, sSCALE + 1, c)
    a('s_mov_b32 s%d, 0x%x\ns_mov_b32 s%d, 0x%x', sLO, f2u(2.0 ** -60), sHI, f2u(2.0 ** 60) - f2u(2.0 ** -60))
    a('s_mov_b32 s%d, 0x00550055\ns_mov_b32 s%d, 0x00550055\ns_mov_b32 s%d, 0x33333333\ns_mov_b32 s%d, 0x33333333', sPM, sPM + 1, sOM, sOM + 1)
    a('s_mov_b32 s%d, 0xffff0000\ns_mov_b32 s%d, 0xffff0000', sODD, sODD + 1)
    a('v_mov_b32 v18, -1\nv_mov_b32 v19, -1')
    for slot in range(2):
        a('s_add_u32 s%d, s%d, %d\ns_addc_u32 s%d, s%d, 0', sPARTA, sPB, slot * 163840, sPARTA + 1, sPB + 1)
        a('s_add_u32 s%d, s%d, 16384\ns_addc_u32 s%d, s%d, 0', sPARTB, sPARTA, sPARTB + 1, sPARTA + 1)
        a('global_store_dwordx2 v%d, v[18:19], s[%d:%d] sc1', vPA, sPARTA, sPARTA + 1)
        a('global_store_dwordx2 v%d, v[18:19], s[%d:%d] sc1', vPA, sPARTB, sPARTB + 1)
        a('global_store_dword v%d, v18, s[%d:%d] sc1', vPB, sPARTA, sPARTA + 1)
    L = a.label('L_ci')
    a('s_cmp_eq_u32 s%d, 0\ns_cbranch_scc1 %s', sRED, L)
    a('s_and_b32 s%d, s%d, 3\ns_mul_i32 s%d, s%d, 2560\ns_lshr_b32 s%d, s%d, 2\ns_lshl_b32 s%d, s%d, 5\ns_add_u32 s%d, s%d, s%d', sT0, sU, sT0, sT0, sT1, sU, sT1, sT1, sT0, sT0, sT1)
    a('s_mul_i32 s%d, s%d, 640\ns_add_u32 s%d, s%d, s%d', sT1, sME, sT0, sT0, sT1)
    a('v_bfe_u32 v%d, v%d, 1, 1\nv_mul_u32_u24 v%d, 1280, v%d\nv_lshl_add_u32 v%d, v%d, 3, v%d\nv_bfe_u32 v%d, v%d, 2, 1\nv_lshl_add_u32 v%d, v%d, 2, v%d\nv_add_u32 v%d, s%d, v%d', vA, vN, vA, vA, vA, vG, vA, vB, vN, vA, vB, vA, vA, sT0, vA)
    a('s_mov_b32 exec_lo, 0x00550055\ns_mov_b32 exec_hi, 0x00550055')
    a('global_load_dword v20, v%d, s[%d:%d]', vA, pM, pM + 1)
    a('s_lshl_b32 s%d, s%d, 14', sT1, sME)
    a('s_waitcnt vmcnt(0)\nv_min_u32 v20, -2, v20')
    for slot in range(4):
        d = 20 if slot == 0 else 18
        a('s_add_u32 s%d, s%d, %d\ns_addc_u32 s%d, s%d, 0', sMO, sMOB, slot * 8192, sMO + 1, sMOB + 1)
        a('s_add_u32 s%d, s%d, %d\ns_add_u32 s%d, s%d, s%d\ns_addc_u32 s%d, s%d, 0', sT0, sT1, slot * 32768, sMXW, sMXB, sT0, sMXW + 1, sMXB + 1)
        a('global_store_dword v%d, v%d, s[%d:%d] sc1\nglobal_store_dword v%d, v%d, s[%d:%d] sc1', vPub, d, sMO, sMO + 1, vPub, d, sMXW, sMXW + 1)
    a('s_mov_b64 exec, -1')
    a(L + ':')
    a('s_waitcnt vmcnt(0) lgkmcnt(0)\ns_barrier'); a.lq = []; a.vq = []
    L = a.label('L_cb'); L2 = a.label('L_cb')
    a('s_cmp_lg_u32 s%d, 3\ns_cbranch_scc1 %s', S_W, L)
    a('s_mov_b64 exec, 1\nv_mov_b32 v18, %d\nv_mov_b32 v19, 1\nglobal_atomic_add v18, v19, s[8:9]\ns_mov_b32 s%d, %d', D_CHAIN * 4, sCNT, SPIN)
    a(L2 + ':\nglobal_load_dword v19, v18, s[8:9] sc1')
    spin_guard(a, sCNT, 3)
    a('s_waitcnt vmcnt(0)\nv_cmp_gt_u32 vcc, 64, v19\ns_cbranch_vccnz %s', L2)
    if not opt.get('nokv'):
        L3 = a.label('L_cb')
        a('s_mov_b64 exec, 3\nv_lshlrev_b32 v18, 8, v%d\ns_mov_b32 s%d, %d', vL16, sCNT, SPIN)
        a(L3 + ':\nglobal_load_dword v19, v18, s[%d:%d] sc1', sKVF, sKVF + 1)
        spin_guard(a, sCNT, 4)
        a('s_waitcnt vmcnt(0)\nv_cmp_gt_u32 vcc, 2, v19\ns_cbranch_vccnz %s', L3)
    a('s_mov_b64 exec, -1')
    a(L + ':\ns_barrier')
    a('s_mov_b32 s%d, 0x3f803f80\ns_mov_b32 s%d, 0x3f803f80', sONE, sONE + 1)
    a('s_mov_b32 s%d, 0\ns_lshl_b32 s%d, s%d, 10\ns_mov_b32 s%d, %d', sSTEP, sW10, S_W, sKXO, L_KX)
    for f in seg_ptr(a, sNEXT, 0): f()
    a('s_add_u32 s%d, s%d, 0x4000\ns_addc_u32 s%d, s%d, 0', sNEXTV, sNEXT, sNEXTV + 1, sNEXT + 1)
    a('s_add_u32 m0, s%d, %d\ns_nop 0', sW10, L_KX)
    a('global_load_lds_dwordx4 v%d, s[%d:%d]', vT16, sNEXT, sNEXT + 1)
    a('s_add_u32 m0, s%d, %d\ns_add_u32 s%d, s%d, 0x1000\ns_addc_u32 s%d, s%d, 0', sW10, L_KX + 4096, sNEXT, sNEXT, sNEXT + 1, sNEXT + 1)
    a('global_load_lds_dwordx4 v%d, s[%d:%d]', vT16, sNEXT, sNEXT + 1)
    a('s_add_u32 m0, s%d, %d\ns_nop 0', sW10, L_VX)
    a('global_load_lds_dwordx4 v%d, s[%d:%d]', vT16, sNEXTV, sNEXTV + 1)
    a('s_add_u32 m0, s%d, %d\ns_add_u32 s%d, s%d, 0x1000\ns_addc_u32 s%d, s%d, 0', sW10, L_VX + 4096, sNEXTV, sNEXTV, sNEXTV + 1, sNEXTV + 1)
    a('global_load_lds_dwordx4 v%d, s[%d:%d]', vT16, sNEXTV, sNEXTV + 1)
    mark(a, opt, 4, 14, 15)
    if opt.get('tm'): a('s_memrealtime s[92:93]\ns_memtime s[96:97]')

def ops(a, text, *args):
    if args: text = text % args
    ls = []
    for l in text.split('\n'):
        if not l.strip(): continue
        if l.startswith('s_addc'): ls[-1] += '\n' + l
        else: ls.append(l)
    return [(lambda l=l: a(l)) for l in ls]

def seg_ptr(a, dst, delta):
    return ops(a, 's_add_u32 s%d, s%d, %d\ns_lshr_b32 s%d, s%d, 1\ns_xor_b32 s%d, s%d, s%d\ns_and_b32 s%d, s%d, 1\ns_lshl_b32 s%d, s%d, 13', sT0, sSTEP, delta, sT1, sT0, sT1, sT1, S_PAR, sT1, sT1, sT1, sT1) + \
        ops(a, 's_lshl_b32 s%d, s%d, 20\ns_add_u32 s%d, s%d, s%d\ns_add_u32 s%d, s%d, s%d\ns_addc_u32 s%d, s%d, 0', sT0, sT0, sT0, sT0, sT1, dst, sSEGB, sT0, dst + 1, sSEGB + 1)

def stamp(a, opt, i):
    a('; PH %d', i)
    if opt.get('stamp'):
        a('s_memtime s[%d:%d]', sST + 2 * i, sST + 2 * i + 1)

def xdelay(a, cyc):
    while cyc > 0:
        n = min(cyc // 4, 16)
        if n <= 0: break
        a('s_nop %d', n - 1); cyc -= 4 * n

class Weave:
    def __init__(self): self.q = []
    def add(self, fs): self.q += fs if isinstance(fs, list) else [fs]
    def go(self, n):
        for i in range(n):
            if self.q: self.q.pop(0)()
    def flush(self): self.go(len(self.q))

def loop(a, fast, me, kind, opt):
    own = '' if fast else ' sc1'
    sfx = '_%s%d%s' % ('f' if fast else 's', me, kind)
    red, flg = kind == 'r', kind == 'g'
    kvf = flg and not opt.get('nokv')
    PW4, PW1, PO1 = MS + 8, 71, 70
    R = [MS, MS + 4, MS + 8, PO]
    W = Weave()
    def ring_ptrs(dMO, dMXW, dMXR, delta):
        f = ops(a, 's_add_u32 s%d, s%d, %d\ns_and_b32 s%d, s%d, 3\ns_lshl_b32 s%d, s%d, 13\ns_add_u32 s%d, s%d, s%d\ns_addc_u32 s%d, s%d, 0', sT0, sSTEP, delta, sT0, sT0, sT1, sT0, dMO, sMOB, sT1, dMO + 1, sMOB + 1)
        f += ops(a, 's_lshl_b32 s%d, s%d, 15', sT0, sT0)
        if dMXW is not None: f += ops(a, 's_add_u32 s%d, s%d, %d\ns_add_u32 s%d, s%d, s%d\ns_addc_u32 s%d, s%d, 0', sT1, sT0, me * 16384, dMXW, sMXB, sT1, dMXW + 1, sMXB + 1)
        if dMXR is not None: f += ops(a, 's_add_u32 s%d, s%d, %d\ns_add_u32 s%d, s%d, s%d\ns_addc_u32 s%d, s%d, 0', sT1, sT0, (1 - me) * 16384, dMXR, sMXB, sT1, dMXR + 1, sMXB + 1)
        return f
    def own_loads(): a('global_load_dwordx4 %s, v%d, s[%d:%d] sc1\nglobal_load_dword v%d, v%d, s[%d:%d] sc1', vr(PW4, 4), vT16, sMO, sMO + 1, PW1, vT4, sMO, sMO + 1)
    def oth_loads(): a('global_load_dwordx4 %s, v%d, s[%d:%d] sc1\nglobal_load_dword v%d, v%d, s[%d:%d] sc1', vr(PO, 4), vT16, sMXR, sMXR + 1, PO1, vT4, sMXR, sMXR + 1)
    early = opt.get('early', 0)
    def rd_wv(b, H):
        op = wv_lds(b, H); st = WS + 8 * (H if b < 5 else (b & 1)); f = []
        for half in range(2):
            base, off = wv_addr(op, half)
            f.append(lambda base=base, off=off, half=half: a.ds(('wv', b, H), 'ds_read_b128 %s, v%d offset:%d', vr(st + 4 * half, 4), base, off))
        return f
    def rd_m(b, slot):
        return lambda: a.ds(('m', b), 'ds_read_b128 %s, v%d offset:%d', vr(MS + 4 * slot, 4), vL16, b * 1024)
    def idle_work():
        for r in range(ACCQ, ACCQ + 24, 2): a('v_mov_b64 %s, 0', vr(r, 2))
        for f in rd_wv(0, 0) + rd_wv(0, 1): f()
    for f in ring_ptrs(sMO, None, sMXR, 0): f()
    own_loads()
    if early: oth_loads()
    idle_work()
    a('L_step%s:' % sfx)
    a('s_waitcnt vmcnt(%d)', 2 if early else 0)
    a('L_own2%s:' % sfx)
    stamp(a, opt, 0)
    a('v_max3_u32 v0, v%d, v%d, v%d\nv_max3_u32 v0, v0, v%d, v%d\nv_cmp_eq_u32 vcc, -1, v0', PW4, PW4 + 1, PW4 + 2, PW4 + 3, PW1)
    a.ds('mw', 'ds_write_b128 v%d, %s offset:%d', vT16, vr(PW4, 4), L_M0)
    a.ds('mw', 'ds_write_b32 v%d, v%d offset:%d', vT4, PW1, L_M0)
    a('s_cbranch_vccnz L_own%s' % sfx)
    if not early: oth_loads()
    a.wl('mw'); a('s_barrier')
    stamp(a, opt, 1)
    rd_m(0, 0)(); rd_m(1, 1)(); rd_m(2, 2)()
    chk = opt.get('chk', 3)
    SB = Weave()
    SB.add(seg_ptr(a, sCUR, 0))
    SB.add(ops(a, 's_xor_b32 s%d, s%d, 0x2000\ns_add_u32 s%d, s%d, %d\ns_addc_u32 s%d, s%d, 0', sCUR, sCUR, sCUR, sCUR, 0x4000 + me * 0x1000, sCUR + 1, sCUR + 1))
    SB.add(seg_ptr(a, sNEXT, 1))
    SB.add(ops(a, 's_add_u32 s%d, s%d, 0x4000\ns_addc_u32 s%d, s%d, 0', sNEXTV, sNEXT, sNEXTV + 1, sNEXT + 1))
    if red: SB.add(ring_ptrs(sMOZ, sMXZ, None, 3))
    SB.add(ops(a, 's_and_b32 s%d, s%d, 1\ns_mul_i32 s%d, s%d, 163840\ns_add_u32 s%d, s%d, s%d\ns_addc_u32 s%d, s%d, 0', sT0, sSTEP, sT0, sT0, sPARTA, sPB, sT0, sPARTA + 1, sPB + 1))
    SB.add(ops(a, 's_add_u32 s%d, s%d, 16384\ns_addc_u32 s%d, s%d, 0\ns_bfe_u32 s%d, s%d, 0x10001', sPARTB, sPARTA, sPARTB + 1, sPARTA + 1, sTAG, sSTEP))
    if kvf: SB.add(ops(a, 's_add_u32 s%d, s%d, 3\ns_min_u32 s%d, s%d, %d', sNEED, sSTEP, sNEED, sNEED, NSEG))
    def mm(d, A, B, pre=None):
        if pre: a.wl(pre)
        smf(a, d, A, B)
        if W.q: W.go(1); SB.go(1)
        else: SB.go(2)
    for b in range(5):
        A = MS + 4 * (b % 3)
        mm(ACCQ, A, wq(b, 0), ('m', b)); mm(ACCQ + 4, A, wq(b, 1)); mm(ACCK, A, wk(b, 0)); mm(ACCK + 4, A, wk(b, 1))
        W.flush()
        if b < 4: W.add(rd_wv(b + 1, 0))
        mm(ACCV, A, WS, ('wv', b, 0))
        if b < 4: W.add(rd_wv(b + 1, 1))
        if b + 3 < 5: W.add(rd_m(b + 3, b % 3))
        mm(ACCV + 4, A, WS + 8, ('wv', b, 1))
        if b == chk:
            a('s_waitcnt vmcnt(0)')
            a('L_oth2%s:' % sfx)
            stamp(a, opt, 2)
            a('v_max3_u32 v0, v%d, v%d, v%d\nv_max3_u32 v0, v0, v%d, v%d\nv_cmp_eq_u32 vcc, -1, v0', PO, PO + 1, PO + 2, PO + 3, PO1)
            lq0 = list(a.lq)
            a.ds('mw', 'ds_write_b128 v%d, %s offset:%d', vT16, vr(PO, 4), L_M1)
            a.ds('mw', 'ds_write_b32 v%d, v%d offset:%d', vT4, PO1, L_M1)
            a('s_cbranch_vccnz L_oth%s' % sfx)
        if b == min(chk + 1, 4):
            W.flush(); a.wl('mw'); a('s_barrier')
            for bb in range(5, 5 + b - 1): rd_m(bb, bb % 3)()
    if chk + 1 < 4: rd_m(7, 7 % 3)()
    SB.flush()
    VQ = Weave()
    if flg:
        if kvf:
            VQ.add(ops(a, 's_mov_b64 exec, 3\nv_lshlrev_b32 v0, 8, v%d\nglobal_load_dword v%d, v0, s[%d:%d] sc1', vL16, PO1, sKVF, sKVF + 1))
        VQ.add(ops(a, 's_mov_b64 exec, 1\nv_mov_b32 v%d, s%d\nglobal_store_dword v%d, v%d, s[%d:%d] sc1\ns_mov_b64 exec, -1', PW1, sSTEP, vL16, PW1, sFLG, sFLG + 1))
        VQ.flush()
    if red:
        a('v_mov_b32 v0, -1\ns_mov_b64 exec, s[%d:%d]', sPM, sPM + 1)
        a('global_store_dword v%d, v0, s[%d:%d]%s\nglobal_store_dword v%d, v0, s[%d:%d] sc1\ns_mov_b64 exec, -1', vPub, sMOZ, sMOZ + 1, own, vPub, sMXZ, sMXZ + 1)
    W.add(ops(a, 's_xor_b32 s%d, s%d, %d\ns_add_u32 m0, s%d, s%d', sT0, sKXO, L_KX ^ L_KX2, sT0, sW10))
    W.add(ops(a, 'global_load_lds_dwordx4 v%d, s[%d:%d]', vT16, sNEXT, sNEXT + 1))
    W.add(ops(a, 's_add_u32 m0, m0, 0x1000\ns_add_u32 s%d, s%d, 0x1000\ns_addc_u32 s%d, s%d, 0', sNEXT, sNEXT, sNEXT + 1, sNEXT + 1))
    W.add(ops(a, 'global_load_lds_dwordx4 v%d, s[%d:%d]', vT16, sNEXT, sNEXT + 1))
    W.add(rd_wv(9, 0) + rd_wv(8, 0))
    vKX = 0
    W.add(ops(a, 'v_add_u32 v%d, s%d, v%d\ns_xor_b32 s%d, s%d, %d', vKX, sKXO, vL16, sKXO, sKXO, L_KX ^ L_KX2))
    for b in range(5, 10):
        A = MS + 4 * (b % 3)
        mm(ACCQ, A, wq(b, 0), ('m', b)); mm(ACCQ + 4, A, wq(b, 1)); mm(ACCK, A, wk(b, 0))
        if b + 3 < 10: W.q.insert(0, rd_m(b + 3, b % 3))
        mm(ACCK + 4, A, wk(b, 1))
    W.flush()
    stamp(a, opt, 3)
    def post(acc, scale, dst, bydim=True):
        f = ops(a, 'v_pk_add_f32 %s, %s, %s\nv_pk_add_f32 %s, %s, %s', vr(acc, 2), vr(acc, 2), vr(acc + 2, 2), vr(acc + 4, 2), vr(acc + 4, 2), vr(acc + 6, 2))
        if scale:
            f += ops(a, 'v_pk_mul_f32 %s, %s, s[%d:%d]\nv_pk_mul_f32 %s, %s, s[%d:%d]', vr(acc, 2), vr(acc, 2), sSCALE, sSCALE + 1, vr(acc + 4, 2), vr(acc + 4, 2), sSCALE, sSCALE + 1)
        if bydim: f += ops(a, 'v_cvt_pk_bf16_f32 v%d, v%d, v%d\nv_cvt_pk_bf16_f32 v%d, v%d, v%d', dst, acc, acc + 4, dst + 1, acc + 1, acc + 5)
        else: f += ops(a, 'v_cvt_pk_bf16_f32 v%d, v%d, v%d\nv_cvt_pk_bf16_f32 v%d, v%d, v%d', dst, acc, acc + 1, dst + 1, acc + 4, acc + 5)
        return f
    def vblock(b, slot, nxt):
        A = MS + 4 * slot
        a.wl(('m', b)); smf(a, ACCV + 4, A, wv_reg(b)); W.go(1)
        a.wl(('wv', b, 0)); smf(a, ACCV, A, WS + 8 * (b & 1)); W.add(nxt); W.go(2)
    vblock(9, 0, rd_wv(7, 0) + [rd_m(5, 0)])
    QP, KP = ACCQ + 2, ACCK + 6
    for f in post(ACCQ, True, QP): f()
    a.ds('tw', 'ds_write2_b32 v%d, v%d, v%d offset0:0 offset1:72', vTw, QP, QP + 1)
    for f in post(ACCK, False, KP): f()
    a('v_add_u32 v%d, 2304, v%d', PW1, vTw)
    a.ds('tw', 'ds_write2_b32 v%d, v%d, v%d offset0:0 offset1:72', PW1, KP, KP + 1)
    vblock(8, 2, rd_wv(6, 0) + [rd_m(6, 2)])
    vblock(7, 1, rd_wv(5, 0))
    W.flush()
    a.wl('tw'); a('s_barrier')
    stamp(a, opt, 4)
    def rd_kx(t, kk, slot): a.ds(('A', slot), 'ds_read_b128 %s, v%d offset:%d', vr(R[slot], 4), vKX, t * 4096 + kk * 1024)
    def rd_tr(tag, dst, base, kk):
        a.ds(tag, 'ds_read_b128 %s, v%d offset:%d', vr(dst, 4), vTr, base + kk * 64)
    QB = WS
    rd_kx(0, 3, 3); rd_kx(0, 1, 1)
    if me == 0: a('global_store_dword v%d, v%d, s[%d:%d] sc1\nglobal_store_dword v%d, v%d, s[%d:%d] offset:288 sc1', vTw, KP, sCUR, sCUR + 1, vTw, KP + 1, sCUR, sCUR + 1)
    else: a('v_lshrrev_b32 v%d, 1, v%d', PW1, vT16)
    vblock(6, 2, []); rd_tr(('q', 0), QB, L_T, 0); rd_tr(('q', 1), QB + 4, L_T, 1); rd_kx(0, 2, 2)
    vblock(5, 0, []); rd_tr(('q', 2), QB + 8, L_T, 2); rd_tr(('q', 3), QB + 12, L_T, 3); rd_kx(0, 0, 0)
    a('s_cmp_eq_u32 s%d, %d\ns_cbranch_scc1 L_last%s', sSTEP, NSEG - 1, sfx)
    VP = ACCV + 2
    VP2 = ACCV + 4
    def pack_v():
        f = post(ACCV, False, VP, False)
        if me == 1: f += ops(a, 'global_store_dwordx2 v%d, %s, s[%d:%d] sc1', PW1, vr(VP, 2), sCUR, sCUR + 1)
        f += ops(a, 'v_mov_b32 v%d, v%d\nv_mov_b32 v%d, 0', VP2, VP + 1, VP2 + 1)
        return f
    S = [ACCQ, ACCQ + 4, ACCK]; PX, PM, E = ACCK + 4, ACCV, ACCV + 6
    def expcvt(src, dst):
        return ops(a, 'v_exp_f32 v%d, v%d\nv_exp_f32 v%d, v%d\nv_exp_f32 v%d, v%d\nv_cvt_pk_bf16_f32 v%d, v%d, v%d', E, src, E + 1, src + 1, PW1, src + 2, dst, E, E + 1) + \
               ops(a, 'v_exp_f32 v%d, v%d\nv_cvt_pk_bf16_f32 v%d, v%d, v%d', E, src + 3, dst + 1, PW1, E)
    def expm():
        return ops(a, 'v_exp_f32 v%d, v%d\nv_exp_f32 v%d, v%d\nv_mov_b32 v%d, 0\nv_cvt_pk_bf16_f32 v%d, v%d, v%d', E, S[2], E + 1, S[2] + 1, PM + 1, PM, E, E + 1)
    order = (1, 2, 3, 0)
    W.add(pack_v())
    for n, kk in enumerate(order):
        a.wl(('q', kk), ('A', kk)); mf32(a, S[0], R[kk], QB + 4 * kk, S[0] if n else None); rd_kx(1, kk, kk)
        if n >= 1: W.go(2)
    W.flush()
    for n, kk in enumerate(order):
        a.wl(('A', kk)); mf32(a, S[1], R[kk], QB + 4 * kk, S[1] if n else None); rd_tr(('A', kk), R[kk], L_T + 2304, kk)
    for f in expcvt(S[0], PX): f()
    W.add(expcvt(S[1], PX + 2))
    for n, kk in enumerate(order):
        a.wl(('A', kk)); mf32(a, S[2], R[kk], QB + 4 * kk, S[2] if n else None)
        if n < 2: a.ds(('vx', n), 'ds_read_b128 %s, v%d offset:%d', vr(R[kk], 4), vT16, L_VX + 4096 * n)
        if n >= 1: W.go(2)
    W.flush()
    VXa, VXb, ONE = R[order[0]], R[order[1]], R[order[2]]
    a('v_mov_b64 %s, s[%d:%d]\nv_mov_b64 %s, s[%d:%d]', vr(ONE, 2), sONE, sONE + 1, vr(ONE + 2, 2), sONE, sONE + 1)
    LA, OA, OB, OP = QB, QB + 4, QB + 8, QB + 12
    W.add(expm())
    a.wl(('vx', 0)); mf32(a, OA, VXa, PX); W.go(1)
    a.wl(('vx', 1)); mf32(a, OB, VXb, PX); W.go(1)
    mf32(a, LA, ONE, PX); W.flush()
    def pv_m():
        mf16(a, LA, ONE, PM, LA); mf16(a, OA, VP, PM, OA); mf16(a, OB, VP2, PM, OB)
    a('s_add_u32 m0, s%d, %d', sW10, L_VX)
    pv_m()
    a('global_load_lds_dwordx4 v%d, s[%d:%d]', vT16, sNEXTV, sNEXTV + 1)
    a('s_add_u32 m0, m0, 0x1000\ns_add_u32 s%d, s%d, 0x1000\ns_addc_u32 s%d, s%d, 0', sNEXTV, sNEXTV, sNEXTV + 1, sNEXTV + 1)
    a('global_load_lds_dwordx4 v%d, s[%d:%d]', vT16, sNEXTV, sNEXTV + 1)
    def norm(check):
        a('v_rcp_f32 v%d, v%d', E, LA)
        if check: a('v_subrev_u32 v0, s%d, v%d\nv_cmp_lt_u32 vcc, s%d, v0', sLO, LA, sHI)
        for r in (OA, OB, OA + 2, OB + 2): a('v_pk_mul_f32 %s, %s, %s op_sel_hi:[1,0]', vr(r, 2), vr(r, 2), vr(E, 2))
        for i in range(4): a('v_cvt_pk_bf16_f32 v%d, v%d, v%d', OP + i, OA + i, OB + i)
    norm(True)
    a('s_cbranch_vccnz L_fb%s' % sfx)
    a('L_norm%s:' % sfx)
    a('s_mov_b64 exec, s[%d:%d]', sOM, sOM + 1)
    a.ds('ow', 'ds_write_b128 v%d, %s offset:%d', vOw, vr(OP, 4), L_O)
    a('s_mov_b64 exec, -1')
    OUT = ACCQ
    for r in range(OUT, OUT + 20, 2): a('v_mov_b64 %s, 0', vr(r, 2))
    if kvf:
        a('s_mov_b64 exec, 3\ns_waitcnt vmcnt(%d)\nL_kv2%s:\nv_cmp_gt_u32 vcc, s%d, v%d\ns_cbranch_vccnz L_kv%s\ns_mov_b64 exec, -1', 7 - me, sfx, sNEED, PO1, sfx)
    a.wl('ow'); a('s_barrier')
    stamp(a, opt, 5)
    for kb in range(2): a.ds(('o', kb), 'ds_read_b128 %s, v%d offset:%d', vr(MS + 4 * kb, 4), vL16, L_O + 1024 * kb)
    D, BS, RD = MS, MS + 8, WS
    if red: a.ds('bs', 'ds_read_b128 %s, v%d offset:%d', vr(BS, 4), vT16, L_BSEL)
    a('s_add_u32 s%d, s%d, 1', sSTEP, sSTEP)
    for f in ring_ptrs(sMO, sMXW if red else None, sMXR, 0): f()
    def post_pair(t, base):
        x, y = OUT + 4 * t, OUT + 4 * t + 4
        f = ops(a, 'v_pk_add_f32 %s, %s, %s\nv_pk_add_f32 %s, %s, %s', vr(x, 2), vr(x, 2), vr(x + 2, 2), vr(y, 2), vr(y, 2), vr(y + 2, 2))
        f += ops(a, 'v_cvt_pk_bf16_f32 v%d, v%d, v%d\nv_cvt_pk_bf16_f32 v%d, v%d, v%d', x + 2, x, y, x + 3, x + 1, y + 1)
        f += ops(a, 'v_and_or_b32 v%d, v%d, -2, s%d\nv_and_or_b32 v%d, v%d, -2, s%d', x + 2, x + 2, sTAG, x + 3, x + 3, sTAG)
        f += ops(a, 'global_store_dwordx2 v%d, %s, s[%d:%d]%s', vPA, vr(x + 2, 2), base, base + 1, own)
        return f
    for t in range(5):
        a.wl(('o', 0)); smf(a, OUT + 4 * t, MS, wo(t, 0)); W.go(2)
        a.wl(('o', 1)); smf(a, OUT + 4 * t, MS + 4, wo(t, 1))
        if t == 3: W.add(post_pair(0, sPARTA))
        W.go(2)
    W.flush()
    for f in post_pair(2, sPARTB): f()
    x = OUT + 16
    a('v_pk_add_f32 %s, %s, %s\nv_cvt_pk_bf16_f32 v%d, v%d, v%d\nv_and_or_b32 v%d, v%d, -2, s%d', vr(x, 2), vr(x, 2), vr(x + 2, 2), x + 2, x, x + 1, x + 2, x + 2, sTAG)
    a('global_store_dword v%d, v%d, s[%d:%d]%s', vPB, x + 2, sPARTA, sPARTA + 1, own)
    stamp(a, opt, 6)
    if red:
        a.wl('bs')
        if opt.get('ackA', 0) >= 0: a('s_waitcnt vmcnt(%d)', opt.get('ackA', 0))
        xdelay(a, opt.get('dA', 0))
        a('L_pa2%s:' % sfx)
        a('global_load_dwordx4 %s, v%d, s[%d:%d] sc1\nglobal_load_dwordx4 %s, v%d, s[%d:%d] offset:1024 sc1', vr(D, 4), vRd, sPARTA, sPARTA + 1, vr(D + 4, 4), vRd, sPARTA, sPARTA + 1)
        a('s_waitcnt vmcnt(1)')
        mf32(a, RD, D, BS)
        a('v_bitop3_b32 v0, v%d, v%d, s%d bitop3:0x7e\nv_bitop3_b32 v%d, v%d, v%d, s%d bitop3:0x7e', D, D + 1, sTAG, PW1, D + 2, D + 3, sTAG)
        a('s_waitcnt vmcnt(0)')
        mf32(a, RD, D + 4, BS, RD)
        a('v_bitop3_b32 v%d, v%d, v%d, s%d bitop3:0x7e\nv_bitop3_b32 v%d, v%d, v%d, s%d bitop3:0x7e', PO, D + 4, D + 5, sTAG, PO + 1, D + 6, D + 7, sTAG)
        a('v_or3_b32 v0, v0, v%d, v%d\nv_bitop3_b32 v0, v0, v%d, 1 bitop3:0xa8\nv_cmp_ne_u32 vcc, 0, v0', PW1, PO, PO + 1)
        a('v_pk_add_f32 %s, %s, %s\nv_add_f32 v%d, v%d, v%d', vr(RD, 2), vr(RD, 2), vr(RD + 2, 2), RD, RD, RD + 1)
        a('s_cbranch_vccnz L_pa%s' % sfx)
        stamp(a, opt, 7)
        a('v_mov_b32_dpp v%d, v%d quad_perm:[1,1,3,3] row_mask:0xf bank_mask:0xf', RD + 1, RD)
        a('v_cvt_pk_bf16_f32 v%d, v%d, v%d\nv_min_u32 v%d, -2, v%d', RD, RD, RD + 1, RD, RD)
        a('s_mov_b64 exec, s[%d:%d]', sPM, sPM + 1)
        if opt.get('pubord', 0) == 0:
            a('global_store_dword v%d, v%d, s[%d:%d]%s\nglobal_store_dword v%d, v%d, s[%d:%d] sc1\ns_mov_b64 exec, -1', vPub, RD, sMO, sMO + 1, own, vPub, RD, sMXW, sMXW + 1)
            if opt.get('ackB', 1) == 1: a('s_waitcnt vmcnt(1)')
        else:
            a('global_store_dword v%d, v%d, s[%d:%d] sc1\nglobal_store_dword v%d, v%d, s[%d:%d]%s\ns_mov_b64 exec, -1', vPub, RD, sMXW, sMXW + 1, vPub, RD, sMO, sMO + 1, own)
            if opt.get('ackB', 1) == 1: a('s_waitcnt vmcnt(0)')
    else:
        a.wl0()
    if opt.get('ackB', 1) == 2:
        a.lq = []; idle_work()
    a('s_barrier')
    if opt.get('ackB', 1) == 3:
        a.lq = []; idle_work()
    xdelay(a, opt.get('dB', 0))
    own_loads()
    if early: oth_loads()
    if opt.get('stamp'):
        a('s_waitcnt lgkmcnt(0)')
        a('s_lshl_b32 s%d, s%d, 2\ns_add_u32 s%d, s%d, s%d\ns_lshl_b32 s%d, s%d, 6\ns_add_u32 s%d, s%d, s%d\ns_lshl_b32 s%d, s%d, 5\ns_add_u32 s%d, s%d, %d', sT0, S_ROLE, sT0, sT0, S_W, sT0, sT0, sT0, sT0, sSTEP, sT0, sT0, sT0, sT0, 160 * 1024 - 2048 - 0 * STAMP)
        a('s_lshl_b32 s%d, s%d, 5\ns_lshl_b32 s%d, s%d, 9\ns_and_b32 s%d, s%d, 0x1e0\ns_add_u32 s%d, s%d, s%d\ns_add_u32 s%d, s%d, 30720', sT0, sSTEP, sT1, S_W, sT0, sT0, sT0, sT0, sT1, sT0, sT0)
        a('v_mov_b32 v0, s%d', sT0)
        for i in range(8): a('v_mov_b32 v%d, s%d', ACCQ + i, sST + 2 * i)
        a('ds_write_b128 v0, %s\nds_write_b128 v0, %s offset:16\ns_waitcnt lgkmcnt(0)', vr(ACCQ, 4), vr(ACCQ + 4, 4))
    if opt.get('ackB', 1) < 2:
        a.lq = []; idle_work()
    a('s_branch L_step%s' % sfx)
    a.lq = []
    def retry(name, code, body, back):
        a('L_%s%s:' % (name, sfx))
        a('s_add_u32 s%d, s%d, 1\ns_cmp_gt_u32 s%d, %d\ns_cbranch_scc1 L_bail%d', sCNT, sCNT, sCNT, SPIN, code)
        body()
        a('s_branch L_%s%s' % (back, sfx))
    retry('own', 5, lambda: (a('s_waitcnt lgkmcnt(0)'), own_loads(), a('s_waitcnt vmcnt(0)')), 'own2')
    retry('oth', 6, lambda: (a('s_waitcnt lgkmcnt(0)'), oth_loads(), a('s_waitcnt vmcnt(0)')), 'oth2')
    if red: retry('pa', 8, lambda: None, 'pa2')
    if kvf: retry('kv', 7, lambda: a('v_lshlrev_b32 v0, 8, v%d\nglobal_load_dword v%d, v0, s[%d:%d] sc1\ns_waitcnt vmcnt(0)', vL16, PO1, sKVF, sKVF + 1), 'kv2')
    a('L_fb%s:' % sfx)
    a('v_max3_f32 v0, v%d, v%d, v%d', S[0], S[0] + 1, S[0] + 2)
    for r in range(S[0] + 3, S[0] + 11, 2): a('v_max3_f32 v0, v0, v%d, v%d', r, r + 1)
    a('v_max_f32 v0, v0, v%d', S[0] + 11)
    a('v_mov_b32 v%d, v0\nv_permlane16_swap_b32 v0, v%d\nv_max_f32 v0, v0, v%d', E, E, E)
    a('v_mov_b32 v%d, v0\nv_permlane32_swap_b32 v0, v%d\nv_max_f32 v0, v0, v%d', E, E, E)
    for r in range(S[0], S[0] + 12): a('v_sub_f32 v%d, v%d, v0', r, r)
    for f in expcvt(S[0], PX) + expcvt(S[1], PX + 2) + expm(): f()
    mf32(a, LA, ONE, PX); mf32(a, OA, VXa, PX); mf32(a, OB, VXb, PX); pv_m()
    norm(False)
    a('s_branch L_norm%s' % sfx)
    a('L_last%s:' % sfx)
    for f in pack_v(): f()
    a('s_waitcnt vmcnt(0) lgkmcnt(0)\ns_barrier')
    if flg:
        a('s_mov_b64 exec, 1\nv_mov_b32 v0, 0\nv_mov_b32 v1, %d\nglobal_store_dword v0, v1, s[%d:%d] sc1\ns_waitcnt vmcnt(0)\ns_mov_b64 exec, -1', NSEG, sFLG, sFLG + 1)
    a('s_branch L_chain_end')
    a.lq = []; a.vq = []

def chain(a, opt):
    setup(a, opt)
    a('s_mov_b32 s%d, 0', sCNT)
    variants = [(f, me, k) for f in (1, 0) for me in (0, 1) for k in 'rig']
    a('s_cmp_eq_u32 s%d, 3\ns_cselect_b32 s%d, 2, 1\ns_cmp_lg_u32 s%d, 0\ns_cselect_b32 s%d, 0, s%d', S_W, sT0, sRED, sT0, sT0)
    a('s_mul_i32 s%d, s%d, 3\ns_add_u32 s%d, s%d, s%d\ns_cmp_eq_u32 s%d, 0\ns_cselect_b32 s%d, 6, 0\ns_add_u32 s%d, s%d, s%d', sT1, sME, sT0, sT0, sT1, S_FAST, sT1, sT0, sT0, sT1)
    for i in range(1, len(variants)): a('s_cmp_eq_u32 s%d, %d\ns_cbranch_scc1 L_var%d', sT0, i, i)
    for i, (f, me, k) in enumerate(variants):
        a('L_var%d:' % i)
        loop(a, f, me, k, opt)
    a('L_chain_end:')
    mark(a, opt, 5, 14, 15)
    if opt.get('stamp'):
        a('s_barrier\nv_lshrrev_b32 v0, 1, v%d\nds_read_b64 v[14:15], v0 offset:30720\ns_lshl_b32 s%d, s%d, 11\ns_add_u32 s%d, s%d, %d\nv_add_u32 v0, s%d, v0\ns_waitcnt lgkmcnt(0)\nglobal_store_dwordx2 v0, v[14:15], s[6:7]\ns_waitcnt vmcnt(0)', vT16, sT0, S_ROLE, sT0, sT0, STAMP, sT0)
    if opt.get('tm'):
        a('s_memrealtime s[94:95]\ns_memtime s[98:99]\ns_waitcnt lgkmcnt(0)\ns_sub_u32 s98, s98, s96\ns_lshl_b32 s98, s98, 8\ns_min_u32 s16, s16, 255\ns_or_b32 s16, s16, s98\ns_lshl_b32 s%d, s%d, 4\ns_add_u32 s%d, s%d, %d\nv_mov_b32 v0, s%d', sT0, S_ROLE, sT0, sT0, STAMP + 0x40000, sT0)
        a('v_mov_b32 v14, s90\nv_mov_b32 v15, s92\nv_mov_b32 v16, s94\nv_mov_b32 v17, s%d\nglobal_store_dwordx4 v0, v[14:17], s[6:7]\ns_waitcnt vmcnt(0)', sCNT)
    a('s_branch L_end')
```

```python
from asmgen import *
from common import *

def spin_guard(a, cnt, code):
    a('s_sub_u32 s%d, s%d, 1', cnt, cnt)
    a('s_cbranch_scc1 L_bail%d', code)

def prologue(a, opt):
    a('s_cmp_ge_u32 s2, 256\ns_cbranch_scc1 L_end')
    a('s_load_dwordx4 s[8:11], s[0:1], %d', KA_DBG)
    a('v_lshrrev_b32 v1, 6, v0\nv_readfirstlane_b32 s%d, v1', S_W)
    a('s_getreg_b32 s12, hwreg(HW_REG_XCC_ID, 0, 4)')
    a('s_waitcnt lgkmcnt(0)')
    a('s_add_u32 s6, s10, 0x3fffff\ns_addc_u32 s7, s11, 0\ns_and_b32 s6, s6, 0xffc00000')
    mark(a, opt, 0, 2, 3, True); mark(a, opt, 1, 2, 3)
    a('v_mov_b32 v2, 0')
    a('s_cmp_lg_u32 s%d, 0\ns_cbranch_scc1 L_role_wait', S_W)
    a('s_lshl_b32 s13, s2, 8\nv_lshl_add_u32 v1, v0, 2, s13')
    a('global_store_dword v1, v2, s[6:7] sc1')
    a('s_lshl_b32 s13, s12, 2\nv_mov_b32 v4, s13\nv_mov_b32 v3, 1\nv_lshlrev_b32 v1, 2, v0')
    a('s_waitcnt vmcnt(0)')
    a('s_mov_b64 exec, 1\nglobal_atomic_add v5, v4, v3, s[8:9] offset:%d sc0\ns_waitcnt vmcnt(0)', D_XCC * 4)
    a('v_readfirstlane_b32 s14, v5')
    a('s_mov_b64 exec, 0xffff\ns_mov_b32 s15, %d', SPIN)
    a('L_arr:')
    a('global_load_dword v5, v1, s[8:9] offset:%d sc1', D_XCC * 4)
    spin_guard(a, 15, 1)
    a('s_waitcnt vmcnt(0)')
    a('v_mov_b32 v6, v5')
    for sh in (1, 2, 4, 8):
        a('v_add_u32_dpp v6, v6, v6 row_shr:%d row_mask:0xf bank_mask:0xf bound_ctrl:0', sh)
    a('v_readlane_b32 s16, v6, 15')
    a('s_cmp_lt_u32 s16, 256\ns_cbranch_scc1 L_arr')
    a('v_readlane_b32 s16, v6, s12\nv_readlane_b32 s17, v5, s12\nv_readlane_b32 s18, v5, 0\nv_readlane_b32 s19, v5, 1')
    a('s_sub_u32 s16, s16, s17\ns_add_u32 s16, s16, s14')
    a('s_xor_b32 s18, s18, 32\ns_xor_b32 s19, s19, 32\ns_or_b32 s18, s18, s19\ns_cmp_eq_u32 s18, 0\ns_cselect_b32 s18, 0x10000, 0\ns_or_b32 s16, s16, s18')
    a('v_mov_b32 v5, s16\nds_write_b32 v2, v5\ns_waitcnt lgkmcnt(0)\ns_mov_b64 exec, -1')
    a('L_role_wait:\ns_barrier\nds_read_b32 v5, v2\ns_waitcnt lgkmcnt(0)\nv_readfirstlane_b32 s16, v5\ns_barrier')
    a('s_and_b32 s%d, s16, 0xffff\ns_lshr_b32 s%d, s16, 16', S_ROLE, S_FAST)
    mark(a, opt, 2, 2, 3)

def probe_parity(a):
    a('s_mov_b64 exec, 1\nv_mov_b32 v2, 0')
    a('s_add_u32 s20, s6, %d\ns_addc_u32 s21, s7, 0', PROBE)
    a('s_mov_b32 s22, -1\ns_mov_b32 s23, -1')
    for i in range(4):
        for p in (0, 1):
            a('v_mov_b32 v1, %d', i * 16384 + p * 8192 + i * 1024)
            a('global_store_dword v1, v2, s[20:21] sc1\ns_waitcnt vmcnt(0)')
            a('s_memtime s[24:25]\ns_waitcnt lgkmcnt(0)')
            a('global_load_dword v3, v1, s[20:21] sc1\ns_waitcnt vmcnt(0)')
            a('s_memtime s[26:27]\ns_waitcnt lgkmcnt(0)')
            a('s_sub_u32 s24, s26, s24\ns_min_u32 s%d, s%d, s24', 22 + p, 22 + p)
    a('s_cmp_lt_u32 s23, s22\ns_cselect_b32 s22, 2, 1')
    a('v_mov_b32 v1, %d\nv_mov_b32 v2, s22\nglobal_store_dword v1, v2, s[8:9] sc1\ns_waitcnt vmcnt(0)', D_PAR * 4)
    a('s_mov_b64 exec, -1')

def get_parity(a, vt=1, vt2=2, st=15):
    L = a.label('L_par')
    a('v_mov_b32 v%d, %d\ns_mov_b32 s%d, %d', vt, D_PAR * 4, st, SPIN)
    a(L + ':')
    a('global_load_dword v%d, v%d, s[8:9] sc1', vt2, vt)
    spin_guard(a, st, 2)
    a('s_waitcnt vmcnt(0)\nv_readfirstlane_b32 s%d, v%d\ns_cmp_eq_u32 s%d, 0\ns_cbranch_scc1 %s', S_PAR, vt2, S_PAR, L)
    a('s_sub_u32 s%d, s%d, 1', S_PAR, S_PAR)

def epilogue(a, ncodes=16):
    for c in range(1, ncodes):
        a('L_bail%d:\ns_mov_b32 s12, %d\ns_branch L_bail', c, c)
    a('L_bail:\ns_mov_b64 exec, 1\nv_mov_b32 v2, s12\nv_mov_b32 v1, %d\nglobal_store_dword v1, v2, s[8:9] sc1\ns_waitcnt vmcnt(0)', D_ERR * 4)
    a('L_end:\ns_endpgm')

def mark(a, opt, word, va, vb, neg=False):
    if not opt.get('mark'): return
    L = a.label('L_mk')
    a('s_cmp_lg_u32 s%d, 0\ns_cbranch_scc1 %s', S_W, L)
    a('s_memrealtime s[98:99]\ns_waitcnt lgkmcnt(0)')
    if neg: a('s_not_b32 s98, s98')
    a('s_mov_b64 s[100:101], exec\ns_mov_b64 exec, 1\nv_mov_b32 v%d, %d\nv_mov_b32 v%d, s98\nglobal_atomic_umax v%d, v%d, s[8:9]\ns_mov_b64 exec, s[100:101]', va, word * 4, vb, va, vb)
    a(L + ':')
```

```python
KA_AX, KA_AWQ, KA_AWK, KA_AWV, KA_AWO, KA_BX, KA_MEM0, KA_WQ, KA_WK, KA_WV, KA_WO, KA_SEG, KA_OUT, KA_DBG, KA_WS = [8*i for i in range(15)]
NSEG = 64
FLAGS = 0
F_K, F_V, F_KM, F_VM, F_O, F_AQ, F_AKV, F_ATT = 0, 32, 64, 96, 128, 192, 200, 208
MX = 0x20000
MO = 0x40000
PROBE = 0x60000
PART = 0x80000
STAMP = 0x180000
AQ = 0x200000
AO = 0x500000
AKV = 0x7C0000
SEG = 0x800000
SEGM = 0x4c00000
XCH = 0x7000000
D_XCC = 32
D_CHAIN = 16
D_PAR = 17
D_QUEUE = 19
D_ERR = 15
SPIN = 1 << 17
S_ROLE, S_W, S_PAR, S_WS, S_DBG, S_FAST = 3, 4, 5, 6, 8, 10
S_VER, S_XCC = 86, 87
```

```python
from asmgen import *
from common import *
from g_pro import spin_guard, get_parity, mark, arrive2, verify
from g_chain import f2u, mf32, mf16, Weave, ops
K_K, K_V, K_QA, K_AQ, K_AO, K_AKV = range(6)
sKIND, sT0, sT1, sT2, sCNT = 11, 12, 13, 14, 15
sSRD, sROW = 16, 20
sX, sOUT, sSEG, sEND, sH, sW10, sFLG, sBUF, sSelLo, sSelHi, sTASK, sSCALE = 36, 38, 40, 41, 42, 43, 44, 46, 47, 48, 49, 50
sPTR, sP2, sP3, sMASK, sLO, sHI, sNEG, sONE = 52, 54, 56, 64, 80, 81, 82, 84
vLane, vN, vG, vT16, vL16, vXg, vX0, vX1, vOut, vOffW, vOffB, vA, vB = range(1, 14)
ACC, XR, PK, GW = 16, 32, 56, 96
XBUF = 40960
L_Q = 3 * XBUF
def gw(ks, H): return GW + (ks >> 1) * 16 + H * 8 + (ks & 1) * 4

def lane_regs(a):
    a('v_and_b32 v%d, 63, v0\nv_and_b32 v%d, 15, v0\nv_bfe_u32 v%d, v0, 4, 2', vLane, vN, vG)
    a('v_lshlrev_b32 v%d, 4, v0\nv_lshlrev_b32 v%d, 4, v%d\ns_lshl_b32 s%d, s%d, 10', vT16, vL16, vLane, sW10, S_W)
    a('s_mov_b32 s%d, 0x05040100\ns_mov_b32 s%d, 0x07060302', sSelLo, sSelHi)
    a('v_lshrrev_b32 v%d, 3, v0\nv_mul_u32_u24 v%d, 1280, v%d\nv_bfe_u32 v%d, v0, 4, 3\nv_and_b32 v%d, 7, v0\nv_xor_b32 v%d, v%d, v%d\nv_lshl_add_u32 v%d, v%d, 4, v%d', vA, vA, vA, vB, vXg, vB, vB, vXg, vXg, vB, vA)
    a('v_lshrrev_b32 v%d, 1, v%d\nv_xor_b32 v%d, v%d, v%d\nv_lshlrev_b32 v%d, 4, v%d\nv_lshl_add_u32 v%d, v%d, 7, v%d\nv_xor_b32 v%d, 64, v%d', vA, vN, vA, vA, vG, vA, vA, vX0, vN, vA, vX1, vX0)

class Loader:
    def __init__(self, a, ring, tmp): self.a = a; self.pend = []; self.n = 0; self.ring = ring; self.tmp = tmp
    def batch(self, voff, ra, rb):
        a = self.a
        if len(self.pend) == len(self.ring): self.retire()
        z = self.ring[self.n % len(self.ring)]; tag = ('w', self.n); self.n += 1
        for q in range(16): a.vm(tag, 'buffer_load_dword v%d, v%d, s[%d:%d], s%d offen', z + q, voff, sSRD, sSRD + 3, sROW + q)
        self.pend.append((tag, z, ra, rb))
    def retire(self):
        a = self.a
        tag, z, ra, rb = self.pend.pop(0)
        a.wv(tag)
        for q in range(8):
            for dst, sel in ((ra + q, sSelLo), (rb + q, sSelHi)):
                if dst < 256: a('v_perm_b32 v%d, v%d, v%d, s%d', dst, z + 2 * q + 1, z + 2 * q, sel)
                else:
                    t = self.tmp + (dst & 3)
                    a('v_perm_b32 v%d, v%d, v%d, s%d\nv_accvgpr_write_b32 a%d, v%d', t, z + 2 * q + 1, z + 2 * q, sel, dst - 256, t)
    def drain(self):
        while self.pend: self.retire()

def row_consts(a, pitch_s):
    for q in range(8):
        for e in range(2): a('s_mul_i32 s%d, s%d, %d', sROW + 2 * q + e, pitch_s, 32 * (q >> 2) + 2 * (q & 3) + e)
    a('s_lshl_b32 s%d, s%d, 3\nv_mul_lo_u32 v%d, v%d, s%d\nv_add_u32 v%d, v%d, v%d', sT0, pitch_s, vA, vG, sT0, vOffW, vOffW, vA)

def srd(a, ptr, off_s, size):
    a('s_add_u32 s%d, s%d, s%d\ns_addc_u32 s%d, s%d, 0\ns_and_b32 s%d, s%d, 0xffff', sSRD, ptr, off_s, sSRD + 1, ptr + 1, sSRD + 1, sSRD + 1)
    a('s_sub_u32 s%d, %d, s%d\ns_mov_b32 s%d, 0x20000', sSRD + 2, size, off_s, sSRD + 3)

def x_dma(a, flag='', step=1):
    f = ops(a, 's_add_u32 m0, s%d, s%d', sBUF, sW10)
    for cb in range(10):
        f += [lambda cb=cb: a.vm('x', 'global_load_lds_dwordx4 v%d, s[%d:%d] offset:%d%s', vXg, sX, sX + 1, cb * 128, flag)]
        if cb < 9: f += ops(a, 's_add_u32 m0, m0, 3968')
    f += ops(a, 's_add_u32 s%d, s%d, %d\ns_addc_u32 s%d, s%d, 0', sX, sX, 40960 * step, sX + 1, sX + 1)
    return f

def gemm(a, trans, W, tsel=None):
    ts = (0, 1) if tsel is None else (0,)
    seq = [(ks, t) for ks in range(20) for t in ts]
    NS = 6
    def rd(i):
        ks, t = seq[i]
        a.ds(('x', i), 'ds_read_b128 %s, v%d offset:%d', vr(XR + 4 * (i % NS), 4), vX1 if ks & 1 else vX0, (ks >> 1) * 4096 + t * 2048)
    for i in range(NS - 1): rd(i)
    for i, (ks, t) in enumerate(seq):
        x = XR + 4 * (i % NS)
        a.wl(('x', i))
        for H in range(2):
            d = ACC + 8 * H + 4 * t
            if trans: mf32(a, d, gw(ks, H), x, d if ks else None)
            else: mf32(a, d, x, gw(ks, H), d if ks else None)
            if H == 0 and i + NS - 1 < len(seq): rd(i + NS - 1)
            else: W.go(1)
    W.flush()

def toggle(a):
    a('s_xor_b32 s%d, s%d, %d', sBUF, sBUF, XBUF)

def flip_read(a):
    a('s_lshl_b32 s%d, s%d, 1\ns_sub_u32 s%d, s%d, %d\nv_add_u32 v%d, s%d, v%d\nv_add_u32 v%d, s%d, v%d', sT0, sBUF, sT0, sT0, XBUF, vX0, sT0, vX0, vX1, sT0, vX1)

def seg_addr(a, dst, seg_s, far, extra):
    a('s_lshr_b32 s%d, s%d, 1\ns_xor_b32 s%d, s%d, s%d\ns_and_b32 s%d, s%d, 1', sT0, seg_s, sT0, sT0, S_PAR, sT0, sT0)
    if far: a('s_xor_b32 s%d, s%d, 1', sT0, sT0)
    a('s_lshl_b32 s%d, s%d, 13\ns_lshl_b32 s%d, s%d, 20\ns_add_u32 s%d, s%d, s%d\ns_add_u32 s%d, s%d, s%d\ns_add_u32 s%d, s%d, %d', sT0, sT0, sT1, seg_s, sT0, sT0, sT1, sT0, sT0, extra, sT0, sT0, SEG)
    a('s_add_u32 s%d, s6, s%d\ns_addc_u32 s%d, s7, 0', dst, sT0, dst + 1)

def flag_addr(a, dst, line_s, base):
    a('s_add_u32 s%d, s%d, %d\ns_lshl_b32 s%d, s%d, 7\ns_add_u32 s%d, s6, s%d\ns_addc_u32 s%d, s7, 0', sT0, line_s, base, sT0, sT0, dst, sT0, dst + 1)

def wait_flag(a, ptr, need, code, nl=1, stride=0):
    L = a.label('L_wf'); L2 = a.label('L_wf')
    a('s_cmp_lg_u32 s%d, 0\ns_cbranch_scc1 %s', S_W, L)
    a('s_mov_b64 exec, %d\nv_mul_u32_u24 v%d, %d, v%d\ns_mov_b32 s%d, %d', (1 << nl) - 1, vA, stride, vLane, sCNT, SPIN)
    a(L2 + ':\nglobal_load_dword v%d, v%d, s[%d:%d] sc1', vB, vA, ptr, ptr + 1)
    spin_guard(a, sCNT, code)
    a('s_waitcnt vmcnt(0)\nv_cmp_gt_u32 vcc, %s, v%d\ns_cbranch_vccnz %s\ns_mov_b64 exec, -1', need, vB, L2)
    a(L + ':')

def signal(a, ptr, val=None):
    L = a.label('L_sg')
    a('s_cmp_lg_u32 s%d, 0\ns_cbranch_scc1 %s\ns_mov_b64 exec, 1\nv_mov_b32 v%d, 0', S_W, L, vA)
    if val is None: a('v_mov_b32 v%d, 1\nglobal_atomic_add v%d, v%d, s[%d:%d]', vB, vA, vB, ptr, ptr + 1)
    else: a('v_mov_b32 v%d, %s\nglobal_store_dword v%d, v%d, s[%d:%d] sc1', vB, val, vA, vB, ptr, ptr + 1)
    a('s_mov_b64 exec, -1\n' + L + ':')

def pack_T(a, t, dst, scale):
    for i in range(0, 4, 2):
        if scale:
            for H in range(2):
                r = ACC + 8 * H + 4 * t + i
                a('v_pk_mul_f32 %s, %s, s[%d:%d]', vr(r, 2), vr(r, 2), sSCALE, sSCALE + 1)
    for i in range(4): a('v_cvt_pk_bf16_f32 v%d, v%d, v%d', dst + i, ACC + 4 * t + i, ACC + 8 + 4 * t + i)

def g_load(a, opt):
    a('L_gload:')
    row_consts(a, sT2)
    a('s_lshl_b32 s%d, s%d, 6', sT2, sT2)
    ld = Loader(a, [32, 48, 64], 80)
    for b in range(10):
        ld.batch(vOffW, GW + 16 * b, GW + 16 * b + 8)
        if b < 9: a('v_add_u32 v%d, s%d, v%d', vOffW, sT2, vOffW)
    ld.drain()
    verify(a, opt, 14, 16, L_Q)
    for k, L in ((K_K, 'L_kloop'), (K_V, 'L_vloop'), (K_QA, 'L_qa'), (K_AQ, 'L_aq'), (K_AO, 'L_ao')):
        a('s_cmp_eq_u32 s%d, %d\ns_cbranch_scc1 %s', sKIND, k, L)
    a('s_branch L_akv')

def g_loop(a, name, trans, epi, nst, flag='', tsel=None, progress=False):
    sRD = 58
    a('%s:' % name)
    a.vq = []; a.lq = []
    a('s_mov_b32 s%d, 0\ns_mov_b32 s%d, 0', sBUF, sRD)
    for f in x_dma(a, flag): f()
    a('s_mov_b32 s%d, %d', sBUF, XBUF)
    for f in x_dma(a, flag): f()
    a('s_waitcnt vmcnt(10)')
    a('%s_top:' % name)
    a('s_waitcnt vmcnt(%d)\ns_barrier', 10 + 2 * nst)
    a('s_add_u32 s%d, s%d, %d\ns_cmp_eq_u32 s%d, %d\ns_cselect_b32 s%d, 0, s%d', sBUF, sBUF, XBUF, sBUF, 3 * XBUF, sBUF, sBUF)
    if progress:
        a('s_max_i32 s%d, s%d, 2\ns_sub_u32 s%d, s%d, 2', sT2, sSEG, sT2, sT2)
        signal(a, sFLG, 's%d' % sT2)
    W = Weave()
    a('s_add_u32 s%d, s%d, 2\ns_cmp_lt_u32 s%d, s%d\ns_cselect_b32 s%d, 0, 40960\ns_sub_u32 s%d, s%d, s%d\ns_subb_u32 s%d, s%d, 0', sT0, sSEG, sT0, sEND, sT0, sX, sX, sT0, sX + 1, sX + 1)
    W.add(x_dma(a, flag))
    gemm(a, trans, W, tsel)
    epi()
    a('s_cmp_eq_u32 s%d, %d\ns_cselect_b32 s%d, %d, 0\ns_sub_u32 s%d, %d, s%d\ns_add_u32 s%d, s%d, s%d', sRD, 2 * XBUF, sT0, 3 * XBUF, sT0, XBUF, sT0, sRD, sRD, sT0)
    a('v_add_u32 v%d, s%d, v%d\nv_add_u32 v%d, s%d, v%d', vX0, sT0, vX0, vX1, sT0, vX1)
    a('s_add_u32 s%d, s%d, 1\ns_cmp_lt_u32 s%d, s%d\ns_cbranch_scc1 %s_top', sSEG, sSEG, sSEG, sEND, name)
    a('s_waitcnt vmcnt(0)\ns_barrier')
    a('v_subrev_u32 v%d, s%d, v%d\nv_subrev_u32 v%d, s%d, v%d', vX0, sRD, vX0, vX1, sRD, vX1)
    a.vq = []; a.lq = []

def head_cols(a):
    a('s_lshl_b32 s%d, s%d, 6\nv_lshl_add_u32 v%d, v%d, 2, s%d', sT0, S_W, vOffW, vN, sT0)

def b_role(a, kind, ka_w, base_role):
    a('s_sub_u32 s%d, s%d, %d\ns_lshr_b32 s%d, s%d, 5\ns_and_b32 s%d, s%d, 31\ns_mov_b32 s%d, %d', sH, S_ROLE, base_role, sSEG, sH, sH, sH, sKIND, kind)
    a('s_load_dwordx2 s[%d:%d], s[0:1], %d\ns_load_dwordx2 s[%d:%d], s[0:1], %d', sPTR, sPTR + 1, ka_w, sX, sX + 1, KA_BX)
    a('s_lshl_b32 s%d, s%d, 8\ns_mov_b32 s%d, 8192\ns_mul_i32 s%d, s%d, 40960\ns_mov_b32 s%d, %d\ns_waitcnt lgkmcnt(0)', sT1, sH, sT2, sT0, sSEG, sEND, NSEG)
    a('s_add_u32 s%d, s%d, s%d\ns_addc_u32 s%d, s%d, 0', sX, sX, sT0, sX + 1, sX + 1)
    srd(a, sPTR, sT1, 640 * 8192)
    head_cols(a)
    a('s_branch L_gload')

def kv_loops(a, opt):
    for name, trans, fl, off in (('L_kloop', True, F_K, 0), ('L_vloop', False, F_V, 16384)):
        a('%s:' % name)
        if opt.get('par') is None: get_parity(a, vA, vB, sCNT)
        else: a('s_mov_b32 s%d, %d', S_PAR, opt['par'])
        mark(a, opt, 6, vA, vB)
        flag_addr(a, sFLG, sH, fl)
        a('s_lshl_b32 s%d, s%d, 15\ns_add_u32 s%d, s%d, %d', sH, sH, sH, sH, off)
        a('v_add_u32 v%d, 4096, v%d', vOut, vT16)
        def epi():
            seg_addr(a, sOUT, sSEG, False, sH)
            for j in range(2):
                d = PK + 4 * j
                if trans: pack_T(a, j, d, False)
                else:
                    for t in range(2):
                        r = ACC + 8 * j + 4 * t
                        a('v_cvt_pk_bf16_f32 v%d, v%d, v%d\nv_cvt_pk_bf16_f32 v%d, v%d, v%d', d + 2 * t, r, r + 1, d + 2 * t + 1, r + 2, r + 3)
                a('global_store_dwordx4 v%d, %s, s[%d:%d] sc1', vOut if j else vT16, vr(d, 4), sOUT, sOUT + 1)
        g_loop(a, name + '_g', trans, epi, 2, progress=True)
        signal(a, sFLG, str(NSEG))
        mark(a, opt, 7, vA, vB)
        a('s_branch L_queue')

def qa_role(a, opt, NQ):
    a('L_qa:')
    if opt.get('par') is None: get_parity(a, vA, vB, sCNT)
    else: a('s_mov_b32 s%d, %d', S_PAR, opt['par'])
    flag_addr(a, sFLG, sH, F_KM)
    a('s_lshl_b32 s%d, s%d, 15', sH, sH)
    c = f2u(128 ** -0.5 * 1.4426950408889634)
    a('s_mov_b32 s%d, 0x%x\ns_mov_b32 s%d, 0x%x\ns_mov_b32 s%d, 0x%x', sSCALE, c, sSCALE + 1, c, sNEG, f2u(-1e30))
    a('s_mov_b32 s%d, 0x3f803f80\ns_mov_b32 s%d, 0x3f803f80', sONE, sONE + 1)
    a('s_and_b32 s%d, s%d, 1\ns_lshl_b32 s%d, s%d, 4\nv_add_u32 v%d, s%d, v%d\nv_lshlrev_b32 v%d, 2, v%d\nv_sub_u32 v%d, v%d, v%d', sT0, S_W, sT0, sT0, vA, sT0, vN, vB, vG, vA, vA, vB)
    for t in range(2):
        for i in range(4): a('v_cmp_le_i32 s[%d:%d], %d, v%d', sMASK + 8 * t + 2 * i, sMASK + 8 * t + 2 * i + 1, 16 * t + i, vA)
    vKm, vQr, vVx, vVm, vO = 14, 15, vOffW, vOffB, vOut
    a('v_lshrrev_b32 v%d, 2, v%d\nv_and_b32 v%d, 1, v%d\nv_lshl_add_u32 v%d, v%d, 1, v%d\nv_mul_u32_u24 v%d, 288, v%d\nv_lshl_add_u32 v%d, v%d, 4, v%d', vA, vN, vB, vN, vA, vA, vB, vA, vA, vKm, vG, vA)
    a('s_and_b32 s%d, s%d, 1\ns_lshl_b32 s%d, s%d, 12\ns_add_u32 s%d, s%d, %d\nv_add_u32 v%d, s%d, v%d', sT0, S_W, sT1, sT0, sT2, sT1, L_Q, vQr, sT2, vL16)
    a('s_lshr_b32 s%d, s%d, 1\ns_lshl_b32 s%d, s%d, 11\nv_add_u32 v%d, s%d, v%d', sT0, S_W, sT2, sT0, vVx, sT2, vL16)
    a('v_add_u32 v%d, s%d, v%d', vO, sT1, vVx)
    a('s_lshl_b32 s%d, s%d, 10\nv_lshrrev_b32 v%d, 1, v%d\nv_add_u32 v%d, s%d, v%d', sT2, sT0, vVm, vL16, vVm, sT2, vVm)
    KX, VX = 256, 256 + 32
    KM, QB, S, VM, P, E = 256 + 48, 64, 16, 92, 28, 80
    LA, OA = 84, 32
    VM2 = 48
    sSEEN, sPO = 58, 60
    def kv_loads():
        seg_addr(a, sP2, sSEG, False, sH)
        a('v_add_u32 v%d, 4096, v%d', vA, vL16)
        for t in range(2):
            for kk in range(4): a('global_load_dwordx4 %s, v%d, s[%d:%d] offset:%d sc1', xr(KX + 16 * t + 4 * kk, 4), vA if t else vL16, sP2, sP2 + 1, 1024 * kk)
        a('s_add_u32 s%d, s%d, 0x4000\ns_addc_u32 s%d, s%d, 0\nv_add_u32 v%d, 4096, v%d', sP2, sP2, sP2 + 1, sP2 + 1, vB, vVx)
        for j in range(2):
            for H in range(2): a('global_load_dwordx4 %s, v%d, s[%d:%d] offset:%d sc1', xr(VX + 8 * j + 4 * H, 4), vB if H else vVx, sP2, sP2 + 1, 1024 * j)
    def m_loads():
        a('s_lshr_b32 s%d, s%d, 2\ns_xor_b32 s%d, s%d, s%d\ns_and_b32 s%d, s%d, 1\ns_lshl_b32 s%d, s%d, 13\ns_lshl_b32 s%d, s%d, 19\ns_add_u32 s%d, s%d, s%d', sT0, sSEG, sT0, sT0, S_PAR, sT0, sT0, sT0, sT0, sT1, sSEG, sT0, sT0, sT1)
        a('s_lshr_b32 s%d, s%d, 1\ns_add_u32 s%d, s%d, s%d\ns_add_u32 s%d, s%d, %d\ns_add_u32 s%d, s6, s%d\ns_addc_u32 s%d, s7, 0', sT1, sH, sT0, sT0, sT1, sT0, sT0, SEGM, sP3, sT0, sP3 + 1)
        for kk in range(4): a('global_load_dwordx4 %s, v%d, s[%d:%d] offset:%d sc1', xr(KM + 4 * kk, 4), vKm, sP3, sP3 + 1, 64 * kk)
        a('s_add_u32 s%d, s%d, 0x1000\ns_addc_u32 s%d, s%d, 0', sP3, sP3, sP3 + 1, sP3 + 1)
        for j in range(2): a('global_load_dwordx2 %s, v%d, s[%d:%d] offset:%d sc1', vr(VM + 2 * j, 2), vVm, sP3, sP3 + 1, 512 * j)
    a('s_mov_b32 s%d, 0\ns_mov_b32 s%d, 0', sBUF, sSEEN)
    flag_addr(a, sPO, sSEG, F_O)
    for f in x_dma(a, '', NQ): f()
    a('s_sub_u32 s%d, s%d, %d\ns_subb_u32 s%d, s%d, 0', sP3, sFLG, (F_KM - F_K) * 128, sP3 + 1, sFLG + 1)
    wait_flag(a, sP3, str(NQ), 14, 2, 32 * 128)
    a('s_waitcnt vmcnt(0)\ns_barrier')
    a('L_qa_top:')
    a.vq = []; a.lq = []
    kv_loads()
    seg_addr(a, sOUT, sSEG, True, sH)
    L1 = a.label('L_qa'); L2 = a.label('L_qa'); L3 = a.label('L_qa')
    a('s_cmp_le_u32 s%d, s%d\ns_cbranch_scc1 %s', sSEEN, sSEG, L1)
    m_loads()
    a(L1 + ':')
    toggle(a)
    W = Weave()
    a('s_add_u32 s%d, s%d, %d\ns_cmp_lt_u32 s%d, s%d\ns_cselect_b32 s%d, 0, %d\ns_sub_u32 s%d, s%d, s%d\ns_subb_u32 s%d, s%d, 0', sT0, sSEG, NQ, sT0, sEND, sT0, 40960 * NQ, sX, sX, sT0, sX + 1, sX + 1)
    W.add(x_dma(a, '', NQ))
    gemm(a, True, W)
    flip_read(a)
    a('v_add_u32 v%d, %d, v%d', vA, L_Q, vT16)
    for t in range(2):
        pack_T(a, t, PK + 4 * t, True)
        a('ds_write_b128 v%d, %s offset:%d', vA, vr(PK + 4 * t, 4), 4096 * t)
    a('s_waitcnt vmcnt(0) lgkmcnt(0)\ns_barrier')
    a('s_cmp_lt_u32 s%d, %d\ns_cbranch_scc1 %s', sSEG, NQ, L2)
    signal(a, sPO)
    a(L2 + ':')
    for kk in range(4): a('ds_read_b128 %s, v%d offset:%d', vr(QB + 4 * kk, 4), vQr, 1024 * kk)
    a('s_cmp_gt_u32 s%d, s%d\ns_cbranch_scc1 %s', sSEEN, sSEG, L3)
    Lp = a.label('L_qa')
    a('s_mov_b64 exec, 3\nv_mul_u32_u24 v%d, %d, v%d\ns_mov_b32 s%d, %d', vA, 32 * 128, vLane, sCNT, SPIN)
    a(Lp + ':\nglobal_load_dword v%d, v%d, s[%d:%d] sc1', vB, vA, sFLG, sFLG + 1)
    spin_guard(a, sCNT, 9)
    a('s_waitcnt vmcnt(0)\nv_readlane_b32 s%d, v%d, 0\nv_readlane_b32 s%d, v%d, 1\ns_min_u32 s%d, s%d, s%d', sT0, vB, sT1, vB, sSEEN, sT0, sT1)
    a('s_cmp_le_u32 s%d, s%d\ns_cbranch_scc1 %s\ns_mov_b64 exec, -1', sSEEN, sSEG, Lp)
    m_loads()
    a(L3 + ':')
    a('s_waitcnt lgkmcnt(0)')
    for t in range(2):
        for kk in range(4): mf32(a, S + 4 * t, KX + 16 * t + 4 * kk, QB + 4 * kk, S + 4 * t if kk else None)
    a('v_mov_b32 v%d, s%d', E, sNEG)
    for t in range(2):
        for i in range(4): a('v_cndmask_b32 v%d, v%d, v%d, s[%d:%d]', S + 4 * t + i, E, S + 4 * t + i, sMASK + 8 * t + 2 * i, sMASK + 8 * t + 2 * i + 1)
    a('v_max3_f32 v%d, v%d, v%d, v%d', E, S, S + 1, S + 2)
    for r in (3, 5): a('v_max3_f32 v%d, v%d, v%d, v%d', E, E, S + r, S + r + 1)
    ONE = 88
    a('v_mov_b64 %s, s[%d:%d]\nv_mov_b64 %s, s[%d:%d]', vr(ONE, 2), sONE, sONE + 1, vr(ONE + 2, 2), sONE, sONE + 1)
    flag_addr(a, sPO, sSEG, F_O)
    a('s_waitcnt vmcnt(0)')
    for kk in range(4): mf32(a, S + 8, KM + 4 * kk, QB + 4 * kk, S + 8 if kk else None)
    for j in range(2): a('v_mov_b32 v%d, v%d\nv_mov_b32 v%d, 0', VM2 + 2 * j, VM + 2 * j + 1, VM2 + 2 * j + 1)
    a('v_max3_f32 v%d, v%d, v%d, v%d\nv_max_f32 v%d, v%d, v%d', E, E, S + 7, S + 8, E, E, S + 9)
    a('v_mov_b32 v%d, v%d\nv_permlane16_swap_b32 v%d, v%d\nv_max_f32 v%d, v%d, v%d', E + 1, E, E, E + 1, E, E, E + 1)
    a('v_mov_b32 v%d, v%d\nv_permlane32_swap_b32 v%d, v%d\nv_max_f32 v%d, v%d, v%d', E + 1, E, E, E + 1, E, E, E + 1)
    for r in range(10): a('v_sub_f32 v%d, v%d, v%d', S + r, S + r, E)
    for r in range(10): a('v_exp_f32 v%d, v%d', S + r, S + r)
    PM = E + 2
    for i in range(4): a('v_cvt_pk_bf16_f32 v%d, v%d, v%d', P + i, S + 2 * i, S + 2 * i + 1)
    a('v_cvt_pk_bf16_f32 v%d, v%d, v%d\nv_mov_b32 v%d, 0', PM, S + 8, S + 9, PM + 1)
    mf32(a, LA, ONE, P)
    for j in range(2):
        for H in range(2): mf32(a, OA + 8 * j + 4 * H, VX + 8 * j + 4 * H, P)
    mf16(a, LA, ONE, PM, LA)
    for j in range(2):
        for H in range(2): mf16(a, OA + 8 * j + 4 * H, (VM2 if H else VM) + 2 * j, PM, OA + 8 * j + 4 * H)
    a('v_rcp_f32 v%d, v%d', E, LA)
    for j in range(2):
        for r in range(0, 8, 2): a('v_pk_mul_f32 %s, %s, %s op_sel_hi:[1,0]', vr(OA + 8 * j + r, 2), vr(OA + 8 * j + r, 2), vr(E, 2))
        for i in range(4): a('v_cvt_pk_bf16_f32 v%d, v%d, v%d', PK + 4 * j + i, OA + 8 * j + i, OA + 8 * j + 4 + i)
        a('global_store_dwordx4 v%d, %s, s[%d:%d] offset:%d sc1', vO, vr(PK + 4 * j, 4), sOUT, sOUT + 1, 1024 * j)
    a('s_barrier')
    a('s_add_u32 s%d, s%d, %d\ns_cmp_lt_u32 s%d, s%d\ns_cbranch_scc1 L_qa_top', sSEG, sSEG, NQ, sSEG, sEND)
    a('s_waitcnt vmcnt(0)\ns_barrier')
    signal(a, sPO)
    a('s_waitcnt vmcnt(0)\ns_branch L_done')
    a.vq = []; a.lq = []

def o_role(a, opt, nsets):
    a('L_orole:')
    a('s_load_dwordx2 s[%d:%d], s[0:1], %d\ns_load_dwordx2 s[%d:%d], s[0:1], %d', sPTR, sPTR + 1, KA_WO, sX, sX + 1, KA_OUT)
    a('s_mul_i32 s%d, s%d, %d\ns_lshl_b32 s%d, s%d, 6\ns_add_u32 s%d, s%d, s%d\ns_mov_b32 s%d, 1280\ns_waitcnt lgkmcnt(0)', sT1, S_W, 1024 * 1280, sT0, sH, sT1, sT1, sT0, sT2)
    srd(a, sPTR, sT1, 4096 * 1280)
    a('v_lshlrev_b32 v%d, 2, v%d', vOffW, vN)
    row_consts(a, sT2)
    ld = Loader(a, [32, 48, 64], 80)
    for b in range(16):
        ld.batch(vOffW, 256 + 16 * b, 256 + 16 * b + 8)
        if b < 15: a('v_add_u32 v%d, %d, v%d', vOffW, 64 * 1280, vOffW)
    ld.drain()
    verify(a, opt, 14, 16, L_Q)
    if opt.get('par') is None: get_parity(a, vA, vB, sCNT)
    else: a('s_mov_b32 s%d, %d', S_PAR, opt['par'])
    a('s_lshl_b32 s%d, s%d, 4\nv_add_u32 v%d, s%d, v%d\nv_mul_u32_u24 v%d, 2560, v%d\nv_lshl_add_u32 v%d, v%d, 4, v%d', sT0, S_W, vA, sT0, vN, vA, vA, vA, vG, vA)
    a('s_lshl_b32 s%d, s%d, 6\ns_add_u32 s%d, s%d, 1280\nv_add_u32 v%d, s%d, v%d', sT0, sH, sT0, sT0, vOut, sT0, vA)
    a('s_lshl_b32 s%d, s%d, 18', sH, S_W)
    a('v_add_u32 v%d, 4096, v%d', vOffB, vL16)
    a('s_lshl_b32 s%d, s%d, 12\nv_add_u32 v%d, s%d, v%d', sT0, S_W, vX0, sT0, vL16)
    a('v_add_u32 v%d, s%d, v%d', vX1, sW10, vL16)
    RB, NR = 32, 48
    a('L_o_top:')
    a.vq = []; a.lq = []
    flag_addr(a, sFLG, sSEG, F_O)
    seg_addr(a, sP2, sSEG, True, sH)
    wait_flag(a, sFLG, '32', 10)
    a('s_barrier')
    seq = [(hh, wq, tt) for hh in range(8) for wq in range(4) for tt in range(2)]
    def ldo(i):
        hh, wq, tt = seq[i]
        if wq == 0 and tt == 0 and hh: a('s_add_u32 s%d, s%d, 0x8000\ns_addc_u32 s%d, s%d, 0', sP2, sP2, sP2 + 1, sP2 + 1)
        a.vm(('o', i), 'global_load_dwordx4 %s, v%d, s[%d:%d] offset:%d sc1', vr(RB + 4 * (i % NR), 4), vOffB if tt else vL16, sP2, sP2 + 1, 1024 * wq)
    for i in range(NR): ldo(i)
    for i, (hh, wq, tt) in enumerate(seq):
        kb = 4 * hh + wq
        a.wv(('o', i))
        for H in range(2):
            d = ACC + 8 * H + 4 * tt
            mf32(a, d, 256 + (kb >> 1) * 16 + 8 * H + (kb & 1) * 4, RB + 4 * (i % NR), d if kb else None)
        if i + NR < len(seq): ldo(i + NR)
    for H in range(2):
        for tt in range(2): a('ds_write_b128 v%d, %s offset:%d', vX0, vr(ACC + 8 * H + 4 * tt, 4), 2048 * H + 1024 * tt)
    a('s_mul_i32 s%d, s%d, %d\ns_add_u32 s%d, s%d, s%d\ns_addc_u32 s%d, s%d, 0', sT0, sSEG, 32 * 2560, sOUT, sX, sT0, sOUT + 1, sX + 1)
    a('s_waitcnt lgkmcnt(0)\ns_barrier')
    L = a.label('L_of')
    a('s_cmp_ge_u32 s%d, 2\ns_cbranch_scc1 %s', S_W, L)
    for ww in range(4):
        for H in range(2): a('ds_read_b128 %s, v%d offset:%d', vr(RB + 8 * ww + 4 * H, 4), vX1, 4096 * ww + 2048 * H)
    a('s_waitcnt lgkmcnt(0)')
    for r in range(0, 8, 2):
        a('v_pk_add_f32 %s, %s, %s\nv_pk_add_f32 %s, %s, %s', vr(RB + r, 2), vr(RB + r, 2), vr(RB + 8 + r, 2), vr(RB + 16 + r, 2), vr(RB + 16 + r, 2), vr(RB + 24 + r, 2))
        a('v_pk_add_f32 %s, %s, %s', vr(RB + r, 2), vr(RB + r, 2), vr(RB + 16 + r, 2))
    for i in range(4): a('v_cvt_pk_bf16_f32 v%d, v%d, v%d', PK + i, RB + i, RB + 4 + i)
    a('global_store_dwordx4 v%d, %s, s[%d:%d]', vOut, vr(PK, 4), sOUT, sOUT + 1)
    a(L + ':')
    a('s_add_u32 s%d, s%d, %d\ns_cmp_lt_u32 s%d, %d\ns_cbranch_scc1 L_o_top', sSEG, sSEG, nsets, sSEG, NSEG)
    a('s_waitcnt vmcnt(0)\ns_branch L_done')
    a.vq = []; a.lq = []
```

```python
from asmgen import *
from common import *
from g_pro import spin_guard, get_parity, mark, arrive1, arrive2, verify
import struct
def f2u(x): return struct.unpack('<I', struct.pack('<f', x))[0]
vIdx, vL16, vT16, vT16B, vT16C, vT4, vPA, vPB, vRd, vPub, vTw, vTr, vOw = range(1, 14)
ACCQ, ACCK, ACCV, MS, WS, PO = 14, 22, 30, 38, 50, 66
WQ, WK0, WK1, WO, WVR = 256, 256 + 160, 72, 136, 216
def wq(b, H): return WQ + (2 * b + H) * 8
def wk(b, H):
    i = 2 * b + H
    return WK0 + i * 8 if i < 12 else WK1 + (i - 12) * 8
def wo(t, kb): return WO + (2 * t + kb) * 8
def wv_lds(b, H):
    if b < 5: return 2 * b + H
    return 10 + (b - 5) if H == 0 else None
def wv_reg(b): return WVR + (b - 5) * 8
L_M0, L_M1, L_KX, L_VX, L_BSEL, L_WV = 0, 5120, 10240, 18432, 26624, 32768
L_T, L_O = L_M0, L_M1
L_KX2 = 155648
def wv_addr(op, half):
    off = L_WV + op * 8192 + half * 4096
    if off < 65536: return vT16, off
    if off < 131072: return vT16B, off - 65536
    return vT16C, off - 131072
sME, sH, sU, sSTEP, sTAG, sCNT, sT0, sT1, sRED = 11, 12, 13, 14, 15, 16, 17, 18, 19
sSRD = 20
sROW = 24
sPARTA, sPARTB, sMO, sMXW, sMXR, sMOZ, sMXZ, sNEXT, sCUR, sFLG, sSCALE = 24, 26, 28, 30, 32, 34, 36, 38, 40, 42, 44
sMOB, sMXB, sSEGB, sPB, sLO, sHI, sKVF = 46, 48, 50, 52, 54, 55, 56
sPM, sOM, sKXO, sW10, sNEXTV, sNEED, sONE, sSEGM = 58, 70, 20, 21, 22, 60, 62, 100
sPTR = 60
sST = 64

def smf(a, d, A, B): a('v_smfmac_f32_16x16x64_bf16 %s, %s, %s, v%d', vr(d, 4), vr(A, 4), xr(B, 8), vIdx)
def mf32(a, d, A, B, C=None): a('v_mfma_f32_16x16x32_bf16 %s, %s, %s, %s', vr(d, 4), xr(A, 4), xr(B, 4), '0' if C is None else vr(C, 4))
def mf16(a, d, A, B, C=None): a('v_mfma_f32_16x16x16_bf16 %s, %s, %s, %s', vr(d, 4), xr(A, 2), xr(B, 2), '0' if C is None else vr(C, 4))

def rowconst(p, e): return 32 * (p >> 2) + 8 * (p & 1) + 2 * ((p >> 1) & 1) + e

class Loader:
    RING = [14, 30, 46]
    TMP = 62
    def __init__(self, a): self.a = a; self.pend = []; self.n = 0
    def batch(self, voff, fin):
        a = self.a
        if len(self.pend) == len(self.RING): self.retire()
        z = self.RING[self.n % len(self.RING)]; tag = ('w', self.n); self.n += 1
        for p in range(8):
            for e in range(2):
                a.vm(tag, 'buffer_load_dword v%d, v%d, s[%d:%d], s%d offen', z + 2 * p + e, voff, sSRD, sSRD + 3, sROW + 2 * p + e)
        self.pend.append((tag, z, fin))
    def retire(self):
        tag, z, fin = self.pend.pop(0)
        self.a.wv(tag); fin(z)
    def drain(self):
        while self.pend: self.retire()

def put(a, dst, X, Y, sel):
    if dst < 256:
        a('v_perm_b32 v%d, v%d, v%d, %s', dst, Y, X, sel)
    else:
        t = Loader.TMP + (dst & 7)
        a('v_perm_b32 v%d, v%d, v%d, %s\nv_accvgpr_write_b32 a%d, v%d', t, Y, X, sel, dst - 256, t)

def set_srd(a, ptr, off_s, size):
    a('s_add_u32 s%d, s%d, s%d\ns_addc_u32 s%d, s%d, 0\ns_and_b32 s%d, s%d, 0xffff', sSRD, ptr, off_s, sSRD + 1, ptr + 1, sSRD + 1, sSRD + 1)
    a('s_sub_u32 s%d, %d, s%d\ns_mov_b32 s%d, 0x20000', sSRD + 2, size, off_s, sSRD + 3)

def setup(a, opt):
    vLane, vN, vG, vA, vB, vH, vg1, vC, vRu, vDu, vM0, vNeg, vArr, vVer = 200, 201, 202, 203, 204, 205, 206, 207, 208, 209, 210, 212, 214, 196
    arrive1(a, vA, vB)
    a('s_lshr_b32 s%d, s%d, 5\ns_and_b32 s%d, s%d, 31', sME, S_ROLE, sH, S_ROLE)
    a('s_load_dwordx8 s[%d:%d], s[0:1], %d\ns_load_dwordx2 s[%d:%d], s[0:1], %d', sPTR, sPTR + 7, KA_MEM0, sPTR + 8, sPTR + 9, KA_WO)
    pM, pQ, pK, pV, pO = sPTR, sPTR + 2, sPTR + 4, sPTR + 6, sPTR + 8
    a('v_lshlrev_b32 v%d, 4, v0\nv_add_u32 v%d, 0x10000, v%d\nv_add_u32 v%d, 0x20000, v%d', vT16, vT16B, vT16, vT16C, vT16)
    a('v_lshlrev_b32 v%d, 2, v0\nv_add_u32 v%d, 0x1000, v%d', vT4, vT4, vT4)
    a('v_and_b32 v%d, 63, v0\nv_and_b32 v%d, 15, v0\nv_lshlrev_b32 v%d, 4, v%d\nv_bfe_u32 v%d, v0, 4, 2', vLane, vN, vL16, vLane, vG)
    a('v_lshrrev_b32 v%d, 5, v%d\nv_and_b32 v%d, 1, v%d', vH, vLane, vg1, vG)
    vOffW, vRowG = 0, 211
    sSelLo, sSelHi, sD45, sD90, sHoff = 72, 73, 74, 75, 76
    sI0, sI1 = 78, 80
    a('v_lshlrev_b32 v%d, 4, v%d\nv_lshl_add_u32 v%d, v%d, 2, v%d', vA, vH, vRowG, vg1, vA)
    a('s_lshl_b32 s%d, s%d, 6\ns_mul_i32 s%d, s%d, %d\ns_add_u32 s%d, s%d, s%d', sT0, S_W, sT1, sME, 5 * 64 * 8192, sT0, sT0, sT1)
    a('v_lshlrev_b32 v%d, 13, v%d\nv_lshl_add_u32 v%d, v%d, 2, v%d\nv_add_u32 v%d, s%d, v%d', vA, vRowG, vA, vN, vA, vOffW, sT0, vA)
    for p in range(8):
        for e in range(2): a('s_mov_b32 s%d, %d', sROW + 2 * p + e, rowconst(p, e) * 8192)
    a('s_mov_b32 s%d, 0x05040100\ns_mov_b32 s%d, 0x07060302', sSelLo, sSelHi)
    a('s_lshl_b32 s%d, s%d, 1\ns_sub_u32 s%d, %d, s%d\ns_sub_u32 s%d, s%d, %d', sT1, sT1, sD45, 64 * 8192, sT1, sD90, sT1, 9 * 64 * 8192)
    a('s_lshl_b32 s%d, s%d, 8', sHoff, sH)
    a('s_waitcnt lgkmcnt(0)')
    ld = Loader(a)
    lo, hi = 's%d' % sSelLo, 's%d' % sSelHi
    def nextblock(b):
        if b == 4: a('v_add_u32 v%d, s%d, v%d', vOffW, sD45, vOffW)
        elif b == 9: a('v_add_u32 v%d, s%d, v%d', vOffW, sD90, vOffW)
        else: a('v_add_u32 v%d, %d, v%d', vOffW, 64 * 8192, vOffW)
    def fin_reg(ra, rb):
        def f(z):
            for p in range(8):
                put(a, ra + p, z + 2 * p, z + 2 * p + 1, lo); put(a, rb + p, z + 2 * p, z + 2 * p + 1, hi)
        return f
    def fin_v(b):
        def f(z):
            for H, sel in ((0, lo), (1, hi)):
                op = wv_lds(b, H)
                if op is None:
                    for p in range(8): put(a, wv_reg(b) + p, z + 2 * p, z + 2 * p + 1, sel)
                else:
                    a.wl0()
                    for p in range(8): put(a, Loader.TMP + p, z + 2 * p, z + 2 * p + 1, sel)
                    for half in range(2):
                        base, off = wv_addr(op, half)
                        a.ds('x', 'ds_write_b128 v%d, %s offset:%d', base, vr(Loader.TMP + 4 * half, 4), off)
        return f
    def addresses():
        a('v_bfe_u32 v%d, v%d, 1, 1\nv_mul_u32_u24 v%d, 0xaaaa, v%d\nv_add_u32 v%d, 0x4444, v%d', vA, vLane, vA, vA, vIdx, vA)
        a('s_lshl_b32 s%d, s%d, 15\ns_lshl_b32 s%d, s%d, 6\ns_add_u32 s%d, s%d, s%d', sT0, S_W, sT1, sH, sT0, sT0, sT1)
        a('v_lshrrev_b32 v%d, 3, v%d\nv_lshl_add_u32 v%d, v%d, 2, v%d\nv_lshlrev_b32 v%d, 11, v%d', vA, vN, vA, vA, vG, vA, vA)
        a('v_and_b32 v%d, 7, v%d\nv_lshl_add_u32 v%d, v%d, 3, v%d\nv_add_u32 v%d, s%d, v%d', vB, vN, vA, vB, vA, vPA, sT0, vA)
        a('s_lshl_b32 s%d, s%d, 13\ns_add_u32 s%d, s%d, s%d\ns_add_u32 s%d, s%d, 0x20000', sT0, S_W, sT0, sT0, sT1, sT0, sT0)
        a('v_lshlrev_b32 v%d, 11, v%d\nv_lshl_add_u32 v%d, v%d, 2, v%d\nv_add_u32 v%d, s%d, v%d', vA, vG, vA, vN, vA, vPB, sT0, vA)
        a('s_lshl_b32 s%d, s%d, 5\ns_add_u32 s%d, s%d, s%d\ns_cmp_lt_u32 s%d, 80\ns_cselect_b32 s%d, 1, 0\ns_cselect_b32 s%d, s%d, 0', sU, S_W, sU, sU, sH, sU, sRED, sU, sU)
        a('v_and_b32 v%d, 3, v%d\nv_lshl_add_u32 v%d, v%d, 2, v%d\nv_lshlrev_b32 v%d, 6, v%d', vA, vLane, vA, vG, vA, vA, vA)
        a('v_lshrrev_b32 v%d, 2, v%d\nv_lshl_add_u32 v%d, v%d, 4, v%d\ns_lshl_b32 s%d, s%d, 11\nv_add_u32 v%d, s%d, v%d', vB, vN, vA, vB, vA, sT0, sU, vRd, sT0, vA)
        a('v_bfe_u32 v%d, v%d, 1, 1\nv_lshl_add_u32 v%d, v%d, 1, v%d', vA, vN, vRu, vH, vA)
        a('v_bfe_u32 v%d, v%d, 2, 1\nv_lshlrev_b32 v%d, 1, v%d\nv_lshl_add_u32 v%d, v%d, 2, v%d', vA, vN, vA, vA, vDu, vg1, vA)
        a('s_lshl_b32 s%d, s%d, 6\nv_lshlrev_b32 v%d, 1, v%d\nv_lshl_add_u32 v%d, v%d, 4, v%d\nv_add_u32 v%d, s%d, v%d', sT0, sU, vA, vDu, vA, vRu, vA, vPub, sT0, vA)
        a('s_lshl_b32 s%d, s%d, 6\nv_mul_u32_u24 v%d, 576, v%d\nv_lshl_add_u32 v%d, v%d, 2, v%d\nv_add_u32 v%d, s%d, v%d', sT0, S_W, vA, vG, vA, vN, vA, vTw, sT0, vA)
        a('v_lshrrev_b32 v%d, 2, v%d\nv_and_b32 v%d, 1, v%d\nv_lshl_add_u32 v%d, v%d, 1, v%d', vA, vN, vB, vN, vC, vA, vB)
        a('v_mul_u32_u24 v%d, 288, v%d\nv_lshl_add_u32 v%d, v%d, 4, v%d', vC, vC, vTr, vG, vC)
        a('s_lshl_b32 s%d, s%d, 9\nv_lshlrev_b32 v%d, 1, v%d\nv_add_u32 v%d, v%d, v%d\nv_lshl_add_u32 v%d, v%d, 1, v%d\nv_lshlrev_b32 v%d, 4, v%d', sT0, S_W, vA, vA, vA, vA, vg1, vA, vA, vB, vA, vA)
        a('v_lshl_add_u32 v%d, v%d, 8, v%d\nv_add_u32 v%d, s%d, v%d', vA, vH, vA, vOw, sT0, vA)
        a('v_and_b32 v%d, 12, v%d\nv_and_b32 v%d, 1, v%d\nv_lshl_add_u32 v%d, v%d, 1, v%d\nv_bfe_u32 v%d, v%d, 1, 1\nv_add_u32 v%d, v%d, v%d', vA, vN, vB, vN, vA, vB, vA, vB, vN, vA, vA, vB)
        a('s_cmp_eq_u32 s%d, 2\ns_cselect_b64 vcc, -1, 0\nv_cndmask_b32 v%d, v%d, v%d, vcc', S_W, vA, vN, vA)
        a('v_mov_b32 v%d, 0x3f80\nv_mov_b32 v%d, 0x3f800000', vB, vC)
        for r in range(4):
            a('v_cmp_eq_u32 vcc, %d, v%d\nv_cndmask_b32 v%d, 0, v%d, vcc', 2 * r, vA, 192 + r, vB)
            a('v_cmp_eq_u32 vcc, %d, v%d\nv_cndmask_b32 v%d, v%d, v%d, vcc', 2 * r + 1, vA, 192 + r, 192 + r, vC)
        a.ds('x', 'ds_write_b128 v%d, v[192:195] offset:%d', vT16, L_BSEL)
        a('s_and_b32 s%d, s%d, 3\ns_mul_i32 s%d, s%d, 2560\ns_lshr_b32 s%d, s%d, 2\ns_lshl_b32 s%d, s%d, 5\ns_add_u32 s%d, s%d, s%d', sT0, sU, sT0, sT0, sT1, sU, sT1, sT1, sT0, sT0, sT1)
        a('s_mul_i32 s%d, s%d, 640\ns_add_u32 s%d, s%d, s%d', sT1, sME, sT0, sT0, sT1)
        a('v_bfe_u32 v%d, v%d, 1, 1\nv_mul_u32_u24 v%d, 1280, v%d\nv_lshl_add_u32 v%d, v%d, 3, v%d\nv_bfe_u32 v%d, v%d, 2, 1\nv_lshl_add_u32 v%d, v%d, 2, v%d\nv_add_u32 v%d, s%d, v%d', vA, vN, vA, vA, vA, vG, vA, vB, vN, vA, vB, vA, vA, sT0, vA)
        a.vm('m0', 'global_load_dword v%d, v%d, s[%d:%d]', vM0, vA, pM, pM + 1)
        c = f2u(128 ** -0.5 * 1.4426950408889634)
        a('s_mov_b32 s%d, 0x%x\ns_mov_b32 s%d, 0x%x', sSCALE, c, sSCALE + 1, c)
        a('s_mov_b32 s%d, 0x%x\ns_mov_b32 s%d, 0x%x', sLO, f2u(2.0 ** -60), sHI, f2u(2.0 ** 60) - f2u(2.0 ** -60))
        a('s_mov_b32 s%d, 0x00550055\ns_mov_b32 s%d, 0x00550055\ns_mov_b32 s%d, 0x33333333\ns_mov_b32 s%d, 0x33333333', sPM, sPM + 1, sOM, sOM + 1)
    def rings():
        if opt.get('par') is None: get_parity(a, vA, vB, sCNT)
        else: a('s_mov_b32 s%d, %d', S_PAR, opt['par'])
        a('s_mul_i32 s%d, s%d, %d\ns_add_u32 s%d, s%d, %d\ns_add_u32 s%d, s6, s%d\ns_addc_u32 s%d, s7, 0', sT0, sME, 2 * 163840, sT0, sT0, PART, sPB, sT0, sPB + 1)
        a('s_lshl_b32 s%d, s%d, 15\ns_add_u32 s%d, s%d, %d\ns_add_u32 s%d, s6, s%d\ns_addc_u32 s%d, s7, 0', sT0, sME, sT0, sT0, MO, sMOB, sT0, sMOB + 1)
        a('s_lshl_b32 s%d, s%d, 13\ns_add_u32 s%d, s%d, %d\ns_add_u32 s%d, s6, s%d\ns_addc_u32 s%d, s7, 0', sT0, S_PAR, sT0, sT0, MX, sMXB, sT0, sMXB + 1)
        a('s_lshl_b32 s%d, s%d, 15\ns_add_u32 s%d, s%d, %d\ns_add_u32 s%d, s6, s%d\ns_addc_u32 s%d, s7, 0', sT0, sH, sT0, sT0, SEG, sSEGB, sT0, sSEGB + 1)
        a('s_lshl_b32 s%d, s%d, 14\ns_lshl_b32 s%d, s%d, 12\ns_add_u32 s%d, s%d, s%d\ns_add_u32 s%d, s%d, %d\ns_add_u32 s%d, s6, s%d\ns_addc_u32 s%d, s7, 0', sT0, sH, sT1, sME, sT0, sT0, sT1, sT0, sT0, SEGM, sSEGM, sT0, sSEGM + 1)
        a('s_lshl_b32 s%d, s%d, 5\ns_add_u32 s%d, s%d, s%d\ns_add_u32 s%d, s%d, %d\ns_lshl_b32 s%d, s%d, 7\ns_add_u32 s%d, s6, s%d\ns_addc_u32 s%d, s7, 0', sT0, sME, sT0, sT0, sH, sT0, sT0, F_KM, sT0, sT0, sFLG, sT0, sFLG + 1)
        a('s_add_u32 s%d, s%d, %d\ns_lshl_b32 s%d, s%d, 7\ns_add_u32 s%d, s6, s%d\ns_addc_u32 s%d, s7, 0', sT0, sH, F_K, sT0, sT0, sKVF, sT0, sKVF + 1)
        a('v_mov_b32 v%d, -1\nv_mov_b32 v%d, -1', vNeg, vNeg + 1)
        for slot in range(2):
            a('s_add_u32 s%d, s%d, %d\ns_addc_u32 s%d, s%d, 0', sI0, sPB, slot * 163840, sI0 + 1, sPB + 1)
            a('s_add_u32 s%d, s%d, 16384\ns_addc_u32 s%d, s%d, 0', sI1, sI0, sI1 + 1, sI0 + 1)
            a('global_store_dwordx2 v%d, %s, s[%d:%d] sc1', vPA, vr(vNeg, 2), sI0, sI0 + 1)
            a('global_store_dwordx2 v%d, %s, s[%d:%d] sc1', vPA, vr(vNeg, 2), sI1, sI1 + 1)
            a('global_store_dword v%d, v%d, s[%d:%d] sc1', vPB, vNeg, sI0, sI0 + 1)
        L = a.label('L_ci')
        a('s_cmp_eq_u32 s%d, 0\ns_cbranch_scc1 %s', sRED, L)
        a('s_lshl_b32 s%d, s%d, 14\nv_min_u32 v%d, -2, v%d\ns_mov_b64 exec, s[%d:%d]', sT1, sME, vM0, vM0, sPM, sPM + 1)
        for slot in range(4):
            d = vM0 if slot == 0 else vNeg
            a('s_add_u32 s%d, s%d, %d\ns_addc_u32 s%d, s%d, 0', sI0, sMOB, slot * 8192, sI0 + 1, sMOB + 1)
            a('s_add_u32 s%d, s%d, %d\ns_add_u32 s%d, s%d, s%d\ns_addc_u32 s%d, s%d, 0', sT0, sT1, slot * 32768, sI1, sMXB, sT0, sI1 + 1, sMXB + 1)
            a('global_store_dword v%d, v%d, s[%d:%d] sc1\nglobal_store_dword v%d, v%d, s[%d:%d] sc1', vPub, d, sI0, sI0 + 1, vPub, d, sI1, sI1 + 1)
        a('s_mov_b64 exec, -1')
        a(L + ':')
    set_srd(a, pQ, sHoff, 640 * 8192)
    for b in range(10):
        ld.batch(vOffW, fin_reg(wq(b, 0), wq(b, 1))); nextblock(b)
        if b == 2: addresses()
        if b == 4: arrive2(a, vA, vArr)
    set_srd(a, pK, sHoff, 640 * 8192)
    for b in range(10):
        ld.batch(vOffW, fin_reg(wk(b, 0), wk(b, 1))); nextblock(b)
        if b == 2:
            a.wl0(); verify(a, opt, vArr, vVer, 30720)
            ld.retire(); rings()
    L = a.label('L_cb')
    a('s_barrier\ns_cmp_lg_u32 s%d, 3\ns_cbranch_scc1 %s', S_W, L)
    a('s_mov_b64 exec, 1\nv_mov_b32 v%d, %d\nv_mov_b32 v%d, 1\nglobal_atomic_add v%d, v%d, s[8:9]\ns_mov_b64 exec, -1', vA, D_CHAIN * 4, vB, vA, vB)
    a(L + ':')
    set_srd(a, pV, sHoff, 640 * 8192)
    for b in range(10):
        ld.batch(vOffW, fin_v(b)); nextblock(b)
    for p in range(8):
        for e in range(2): a('s_mov_b32 s%d, %d', sROW + 2 * p + e, rowconst(p, e) * 1280)
    a('s_mul_i32 s%d, s%d, 163840\ns_mul_i32 s%d, s%d, 640\ns_add_u32 s%d, s%d, s%d', sT1, sH, sT0, sME, sT1, sT1, sT0)
    set_srd(a, pO, sT1, 4096 * 1280)
    vOffO, vSel5 = 70, 71
    a('v_mul_u32_u24 v%d, 1280, v%d', vRowG, vRowG)
    a('s_lshl_b32 s%d, s%d, 7\nv_lshl_add_u32 v%d, v%d, 2, v%d\nv_add_u32 v%d, s%d, v%d', sT0, S_W, vOffW, vN, vRowG, vOffW, sT0, vOffW)
    a('s_lshl_b32 s%d, s%d, 5\ns_add_u32 s%d, s%d, 512', sT0, S_W, sT0, sT0)
    a('v_lshrrev_b32 v%d, 1, v%d\nv_lshl_add_u32 v%d, v%d, 2, v%d\nv_add_u32 v%d, s%d, v%d', vOffO, vN, vOffO, vOffO, vRowG, vOffO, sT0, vOffO)
    a('v_and_b32 v%d, 1, v%d\nv_mul_u32_u24 v%d, 0x0202, v%d\nv_lshl_or_b32 v%d, v%d, 16, v%d\nv_add_u32 v%d, 0x05040100, v%d', vSel5, vN, vSel5, vSel5, vSel5, vSel5, vSel5, vSel5, vSel5)
    for P in range(2):
        for kb in range(2):
            ld.batch(vOffW, fin_reg(wo(2 * P, kb), wo(2 * P + 1, kb)))
            a('v_add_u32 v%d, %d, v%d', vOffW, (64 * 1280) if kb == 0 else (64 - 64 * 1280), vOffW)
    def fin5(kb):
        def f(z):
            for p in range(8): put(a, wo(4, kb) + p, z + 2 * p, z + 2 * p + 1, 'v%d' % vSel5)
        return f
    for kb in range(2):
        ld.batch(vOffO, fin5(kb))
        a('v_add_u32 v%d, %d, v%d', vOffO, 64 * 1280, vOffO)
    L = a.label('L_cb'); L2 = a.label('L_cb')
    a('s_cmp_lg_u32 s%d, 3\ns_cbranch_scc1 %s', S_W, L)
    a('s_mov_b64 exec, 1\nv_mov_b32 v0, %d\ns_mov_b32 s%d, %d', D_CHAIN * 4, sCNT, SPIN)
    a(L2 + ':\nglobal_load_dword v70, v0, s[8:9] sc1')
    spin_guard(a, sCNT, 3)
    a('s_waitcnt vmcnt(0)\nv_cmp_gt_u32 vcc, 64, v70\ns_cbranch_vccnz %s', L2)
    if not opt.get('nokv'):
        L3 = a.label('L_cb')
        a('s_mov_b64 exec, 3\nv_lshlrev_b32 v0, 8, v%d\ns_mov_b32 s%d, %d', vL16, sCNT, SPIN)
        a(L3 + ':\nglobal_load_dword v70, v0, s[%d:%d] sc1', sKVF, sKVF + 1)
        spin_guard(a, sCNT, 4)
        a('s_waitcnt vmcnt(0)\nv_cmp_gt_u32 vcc, 2, v70\ns_cbranch_vccnz %s', L3)
    a('s_mov_b64 exec, -1')
    a(L + ':')
    ld.drain(); a.wl0()
    mark(a, opt, 3, 14, 15)
    a('s_barrier'); a.lq = []; a.vq = []
    a('s_mov_b32 s%d, 0x3f803f80\ns_mov_b32 s%d, 0x3f803f80', sONE, sONE + 1)
    a('s_mov_b32 s%d, 0\ns_lshl_b32 s%d, s%d, 10\ns_mov_b32 s%d, %d', sSTEP, sW10, S_W, sKXO, L_KX)
    for f in seg_ptr(a, sNEXT, 0): f()
    a('s_add_u32 s%d, s%d, 0x4000\ns_addc_u32 s%d, s%d, 0', sNEXTV, sNEXT, sNEXTV + 1, sNEXT + 1)
    a('s_add_u32 m0, s%d, %d\ns_nop 0', sW10, L_KX)
    a('global_load_lds_dwordx4 v%d, s[%d:%d]', vT16, sNEXT, sNEXT + 1)
    a('s_add_u32 m0, s%d, %d\ns_add_u32 s%d, s%d, 0x1000\ns_addc_u32 s%d, s%d, 0', sW10, L_KX + 4096, sNEXT, sNEXT, sNEXT + 1, sNEXT + 1)
    a('global_load_lds_dwordx4 v%d, s[%d:%d]', vT16, sNEXT, sNEXT + 1)
    a('s_add_u32 m0, s%d, %d\ns_nop 0', sW10, L_VX)
    a('global_load_lds_dwordx4 v%d, s[%d:%d]', vT16, sNEXTV, sNEXTV + 1)
    a('s_add_u32 m0, s%d, %d\ns_add_u32 s%d, s%d, 0x1000\ns_addc_u32 s%d, s%d, 0', sW10, L_VX + 4096, sNEXTV, sNEXTV, sNEXTV + 1, sNEXTV + 1)
    a('global_load_lds_dwordx4 v%d, s[%d:%d]', vT16, sNEXTV, sNEXTV + 1)
    mark(a, opt, 4, 14, 15)
    if opt.get('tm'): a('s_memrealtime s[92:93]\ns_memtime s[96:97]')

def ops(a, text, *args):
    if args: text = text % args
    ls = []
    for l in text.split('\n'):
        if not l.strip(): continue
        if l.startswith('s_addc'): ls[-1] += '\n' + l
        else: ls.append(l)
    return [(lambda l=l: a(l)) for l in ls]

def seg_ptr(a, dst, delta):
    return ops(a, 's_add_u32 s%d, s%d, %d\ns_lshr_b32 s%d, s%d, 1\ns_xor_b32 s%d, s%d, s%d\ns_and_b32 s%d, s%d, 1\ns_lshl_b32 s%d, s%d, 13', sT0, sSTEP, delta, sT1, sT0, sT1, sT1, S_PAR, sT1, sT1, sT1, sT1) + \
        ops(a, 's_lshl_b32 s%d, s%d, 20\ns_add_u32 s%d, s%d, s%d\ns_add_u32 s%d, s%d, s%d\ns_addc_u32 s%d, s%d, 0', sT0, sT0, sT0, sT0, sT1, dst, sSEGB, sT0, dst + 1, sSEGB + 1)

def stamp_reg(i): return (72, 74, 76, 78, 80, 82, 84, 88)[i]
def stamp(a, opt, i):
    a('; PH %d', i)
    if opt.get('stamp'):
        a('s_memtime s[%d:%d]', stamp_reg(i), stamp_reg(i) + 1)

def xdelay(a, cyc):
    while cyc > 0:
        n = min(cyc // 4, 16)
        if n <= 0: break
        a('s_nop %d', n - 1); cyc -= 4 * n

class Weave:
    def __init__(self): self.q = []
    def add(self, fs): self.q += fs if isinstance(fs, list) else [fs]
    def go(self, n):
        for i in range(n):
            if self.q: self.q.pop(0)()
    def flush(self): self.go(len(self.q))

def loop(a, fast, me, kind, opt):
    own = '' if fast else ' sc1'
    sfx = '_%s%d%s' % ('f' if fast else 's', me, kind)
    red, flg = kind == 'r', kind == 'g'
    kvf = flg and not opt.get('nokv')
    PW4, PW1, PO1 = MS + 8, 71, 70
    R = [MS, MS + 4, MS + 8, PO]
    W = Weave()
    def ring_ptrs(dMO, dMXW, dMXR, delta):
        f = ops(a, 's_add_u32 s%d, s%d, %d\ns_and_b32 s%d, s%d, 3\ns_lshl_b32 s%d, s%d, 13\ns_add_u32 s%d, s%d, s%d\ns_addc_u32 s%d, s%d, 0', sT0, sSTEP, delta, sT0, sT0, sT1, sT0, dMO, sMOB, sT1, dMO + 1, sMOB + 1)
        f += ops(a, 's_lshl_b32 s%d, s%d, 15', sT0, sT0)
        if dMXW is not None: f += ops(a, 's_add_u32 s%d, s%d, %d\ns_add_u32 s%d, s%d, s%d\ns_addc_u32 s%d, s%d, 0', sT1, sT0, me * 16384, dMXW, sMXB, sT1, dMXW + 1, sMXB + 1)
        if dMXR is not None: f += ops(a, 's_add_u32 s%d, s%d, %d\ns_add_u32 s%d, s%d, s%d\ns_addc_u32 s%d, s%d, 0', sT1, sT0, (1 - me) * 16384, dMXR, sMXB, sT1, dMXR + 1, sMXB + 1)
        return f
    def own_loads(): a('global_load_dwordx4 %s, v%d, s[%d:%d] sc1\nglobal_load_dword v%d, v%d, s[%d:%d] sc1', vr(PW4, 4), vT16, sMO, sMO + 1, PW1, vT4, sMO, sMO + 1)
    def oth_loads(): a('global_load_dwordx4 %s, v%d, s[%d:%d] sc1\nglobal_load_dword v%d, v%d, s[%d:%d] sc1', vr(PO, 4), vT16, sMXR, sMXR + 1, PO1, vT4, sMXR, sMXR + 1)
    early = opt.get('early', 0)
    def rd_wv(b, H):
        op = wv_lds(b, H); st = WS + 8 * (H if b < 5 else (b & 1)); f = []
        for half in range(2):
            base, off = wv_addr(op, half)
            f.append(lambda base=base, off=off, half=half: a.ds(('wv', b, H), 'ds_read_b128 %s, v%d offset:%d', vr(st + 4 * half, 4), base, off))
        return f
    def rd_m(b, slot):
        return lambda: a.ds(('m', b), 'ds_read_b128 %s, v%d offset:%d', vr(MS + 4 * slot, 4), vL16, b * 1024)
    def idle_work():
        for r in range(ACCQ, ACCQ + 24, 2): a('v_mov_b64 %s, 0', vr(r, 2))
        for f in rd_wv(0, 0) + rd_wv(0, 1): f()
    for f in ring_ptrs(sMO, None, sMXR, 0): f()
    own_loads()
    if early: oth_loads()
    idle_work()
    a('L_step%s:' % sfx)
    a('s_waitcnt vmcnt(%d)', 2 if early else 0)
    a('L_own2%s:' % sfx)
    stamp(a, opt, 0)
    a('v_max3_u32 v0, v%d, v%d, v%d\nv_max3_u32 v0, v0, v%d, v%d\nv_cmp_eq_u32 vcc, -1, v0', PW4, PW4 + 1, PW4 + 2, PW4 + 3, PW1)
    a.ds('mw', 'ds_write_b128 v%d, %s offset:%d', vT16, vr(PW4, 4), L_M0)
    a.ds('mw', 'ds_write_b32 v%d, v%d offset:%d', vT4, PW1, L_M0)
    a('s_cbranch_vccnz L_own%s' % sfx)
    if not early: oth_loads()
    a.wl('mw'); a('s_barrier')
    stamp(a, opt, 1)
    rd_m(0, 0)(); rd_m(1, 1)(); rd_m(2, 2)()
    chk = opt.get('chk', 3)
    SB = Weave()
    SB.add(ops(a, 's_lshr_b32 s%d, s%d, 2\ns_xor_b32 s%d, s%d, s%d\ns_and_b32 s%d, s%d, 1\ns_lshl_b32 s%d, s%d, 13\ns_lshl_b32 s%d, s%d, 19\ns_add_u32 s%d, s%d, s%d', sT0, sSTEP, sT0, sT0, S_PAR, sT0, sT0, sT0, sT0, sT1, sSTEP, sT0, sT0, sT1))
    SB.add(ops(a, 's_add_u32 s%d, s%d, s%d\ns_addc_u32 s%d, s%d, 0', sCUR, sSEGM, sT0, sCUR + 1, sSEGM + 1))
    SB.add(seg_ptr(a, sNEXT, 1))
    SB.add(ops(a, 's_add_u32 s%d, s%d, 0x4000\ns_addc_u32 s%d, s%d, 0', sNEXTV, sNEXT, sNEXTV + 1, sNEXT + 1))
    if red: SB.add(ring_ptrs(sMOZ, sMXZ, None, 3))
    SB.add(ops(a, 's_and_b32 s%d, s%d, 1\ns_mul_i32 s%d, s%d, 163840\ns_add_u32 s%d, s%d, s%d\ns_addc_u32 s%d, s%d, 0', sT0, sSTEP, sT0, sT0, sPARTA, sPB, sT0, sPARTA + 1, sPB + 1))
    SB.add(ops(a, 's_add_u32 s%d, s%d, 16384\ns_addc_u32 s%d, s%d, 0\ns_bfe_u32 s%d, s%d, 0x10001', sPARTB, sPARTA, sPARTB + 1, sPARTA + 1, sTAG, sSTEP))
    if kvf: SB.add(ops(a, 's_add_u32 s%d, s%d, 3\ns_min_u32 s%d, s%d, %d', sNEED, sSTEP, sNEED, sNEED, NSEG))
    def mm(d, A, B, pre=None):
        if pre: a.wl(pre)
        smf(a, d, A, B)
        if W.q: W.go(1); SB.go(1)
        else: SB.go(2)
    for b in range(5):
        A = MS + 4 * (b % 3)
        mm(ACCQ, A, wq(b, 0), ('m', b)); mm(ACCQ + 4, A, wq(b, 1)); mm(ACCK, A, wk(b, 0)); mm(ACCK + 4, A, wk(b, 1))
        W.flush()
        if b < 4: W.add(rd_wv(b + 1, 0))
        mm(ACCV, A, WS, ('wv', b, 0))
        if b < 4: W.add(rd_wv(b + 1, 1))
        if b + 3 < 5: W.add(rd_m(b + 3, b % 3))
        mm(ACCV + 4, A, WS + 8, ('wv', b, 1))
        if b == chk:
            a('s_waitcnt vmcnt(0)')
            a('L_oth2%s:' % sfx)
            stamp(a, opt, 2)
            a('v_max3_u32 v0, v%d, v%d, v%d\nv_max3_u32 v0, v0, v%d, v%d\nv_cmp_eq_u32 vcc, -1, v0', PO, PO + 1, PO + 2, PO + 3, PO1)
            lq0 = list(a.lq)
            a.ds('mw', 'ds_write_b128 v%d, %s offset:%d', vT16, vr(PO, 4), L_M1)
            a.ds('mw', 'ds_write_b32 v%d, v%d offset:%d', vT4, PO1, L_M1)
            a('s_cbranch_vccnz L_oth%s' % sfx)
        if b == min(chk + 1, 4):
            W.flush(); a.wl('mw'); a('s_barrier')
            for bb in range(5, 5 + b - 1): rd_m(bb, bb % 3)()
    if chk + 1 < 4: rd_m(7, 7 % 3)()
    SB.flush()
    VQ = Weave()
    if flg:
        if kvf:
            VQ.add(ops(a, 's_mov_b64 exec, 3\nv_lshlrev_b32 v0, 8, v%d\nglobal_load_dword v%d, v0, s[%d:%d] sc1', vL16, PO1, sKVF, sKVF + 1))
        VQ.add(ops(a, 's_mov_b64 exec, 1\nv_mov_b32 v%d, s%d\nglobal_store_dword v%d, v%d, s[%d:%d] sc1\ns_mov_b64 exec, -1', PW1, sSTEP, vL16, PW1, sFLG, sFLG + 1))
        VQ.flush()
    if red:
        a('v_mov_b32 v0, -1\ns_mov_b64 exec, s[%d:%d]', sPM, sPM + 1)
        a('global_store_dword v%d, v0, s[%d:%d]%s\nglobal_store_dword v%d, v0, s[%d:%d] sc1\ns_mov_b64 exec, -1', vPub, sMOZ, sMOZ + 1, own, vPub, sMXZ, sMXZ + 1)
    W.add(ops(a, 's_xor_b32 s%d, s%d, %d\ns_add_u32 m0, s%d, s%d', sT0, sKXO, L_KX ^ L_KX2, sT0, sW10))
    W.add(ops(a, 'global_load_lds_dwordx4 v%d, s[%d:%d]', vT16, sNEXT, sNEXT + 1))
    W.add(ops(a, 's_add_u32 m0, m0, 0x1000\ns_add_u32 s%d, s%d, 0x1000\ns_addc_u32 s%d, s%d, 0', sNEXT, sNEXT, sNEXT + 1, sNEXT + 1))
    W.add(ops(a, 'global_load_lds_dwordx4 v%d, s[%d:%d]', vT16, sNEXT, sNEXT + 1))
    W.add(rd_wv(9, 0) + rd_wv(8, 0))
    vKX = 0
    W.add(ops(a, 'v_add_u32 v%d, s%d, v%d\ns_xor_b32 s%d, s%d, %d', vKX, sKXO, vL16, sKXO, sKXO, L_KX ^ L_KX2))
    for b in range(5, 10):
        A = MS + 4 * (b % 3)
        mm(ACCQ, A, wq(b, 0), ('m', b)); mm(ACCQ + 4, A, wq(b, 1)); mm(ACCK, A, wk(b, 0))
        if b + 3 < 10: W.q.insert(0, rd_m(b + 3, b % 3))
        mm(ACCK + 4, A, wk(b, 1))
    W.flush()
    stamp(a, opt, 3)
    def post(acc, scale, dst, bydim=True):
        f = ops(a, 'v_pk_add_f32 %s, %s, %s\nv_pk_add_f32 %s, %s, %s', vr(acc, 2), vr(acc, 2), vr(acc + 2, 2), vr(acc + 4, 2), vr(acc + 4, 2), vr(acc + 6, 2))
        if scale:
            f += ops(a, 'v_pk_mul_f32 %s, %s, s[%d:%d]\nv_pk_mul_f32 %s, %s, s[%d:%d]', vr(acc, 2), vr(acc, 2), sSCALE, sSCALE + 1, vr(acc + 4, 2), vr(acc + 4, 2), sSCALE, sSCALE + 1)
        if bydim: f += ops(a, 'v_cvt_pk_bf16_f32 v%d, v%d, v%d\nv_cvt_pk_bf16_f32 v%d, v%d, v%d', dst, acc, acc + 4, dst + 1, acc + 1, acc + 5)
        else: f += ops(a, 'v_cvt_pk_bf16_f32 v%d, v%d, v%d\nv_cvt_pk_bf16_f32 v%d, v%d, v%d', dst, acc, acc + 1, dst + 1, acc + 4, acc + 5)
        return f
    def vblock(b, slot, nxt):
        A = MS + 4 * slot
        a.wl(('m', b)); smf(a, ACCV + 4, A, wv_reg(b)); W.go(1)
        a.wl(('wv', b, 0)); smf(a, ACCV, A, WS + 8 * (b & 1)); W.add(nxt); W.go(2)
    vblock(9, 0, rd_wv(7, 0) + [rd_m(5, 0)])
    QP, KP = ACCQ + 2, ACCK + 6
    for f in post(ACCQ, True, QP): f()
    a.ds('tw', 'ds_write2_b32 v%d, v%d, v%d offset0:0 offset1:72', vTw, QP, QP + 1)
    for f in post(ACCK, False, KP): f()
    a('v_add_u32 v%d, 2304, v%d', PW1, vTw)
    a.ds('tw', 'ds_write2_b32 v%d, v%d, v%d offset0:0 offset1:72', PW1, KP, KP + 1)
    vblock(8, 2, rd_wv(6, 0) + [rd_m(6, 2)])
    vblock(7, 1, rd_wv(5, 0))
    W.flush()
    a.wl('tw'); a('s_barrier')
    stamp(a, opt, 4)
    def rd_kx(t, kk, slot): a.ds(('A', slot), 'ds_read_b128 %s, v%d offset:%d', vr(R[slot], 4), vKX, t * 4096 + kk * 1024)
    def rd_tr(tag, dst, base, kk):
        a.ds(tag, 'ds_read_b128 %s, v%d offset:%d', vr(dst, 4), vTr, base + kk * 64)
    QB = WS
    rd_kx(0, 3, 3); rd_kx(0, 1, 1)
    if me == 0: a('global_store_dword v%d, v%d, s[%d:%d] sc1\nglobal_store_dword v%d, v%d, s[%d:%d] offset:288 sc1', vTw, KP, sCUR, sCUR + 1, vTw, KP + 1, sCUR, sCUR + 1)
    else: a('v_lshrrev_b32 v%d, 1, v%d', PW1, vT16)
    vblock(6, 2, []); rd_tr(('q', 0), QB, L_T, 0); rd_tr(('q', 1), QB + 4, L_T, 1); rd_kx(0, 2, 2)
    vblock(5, 0, []); rd_tr(('q', 2), QB + 8, L_T, 2); rd_tr(('q', 3), QB + 12, L_T, 3); rd_kx(0, 0, 0)
    a('s_cmp_eq_u32 s%d, %d\ns_cbranch_scc1 L_last%s', sSTEP, NSEG - 1, sfx)
    VP = ACCV + 2
    VP2 = ACCV + 4
    def pack_v():
        f = post(ACCV, False, VP, False)
        if me == 1: f += ops(a, 'global_store_dwordx2 v%d, %s, s[%d:%d] sc1', PW1, vr(VP, 2), sCUR, sCUR + 1)
        f += ops(a, 'v_mov_b32 v%d, v%d\nv_mov_b32 v%d, 0', VP2, VP + 1, VP2 + 1)
        return f
    S = [ACCQ, ACCQ + 4, ACCK]; PX, PM, E = ACCK + 4, ACCV, ACCV + 6
    def expcvt(src, dst):
        return ops(a, 'v_exp_f32 v%d, v%d\nv_exp_f32 v%d, v%d\nv_exp_f32 v%d, v%d\nv_cvt_pk_bf16_f32 v%d, v%d, v%d', E, src, E + 1, src + 1, PW1, src + 2, dst, E, E + 1) + \
               ops(a, 'v_exp_f32 v%d, v%d\nv_cvt_pk_bf16_f32 v%d, v%d, v%d', E, src + 3, dst + 1, PW1, E)
    def expm():
        return ops(a, 'v_exp_f32 v%d, v%d\nv_exp_f32 v%d, v%d\nv_mov_b32 v%d, 0\nv_cvt_pk_bf16_f32 v%d, v%d, v%d', E, S[2], E + 1, S[2] + 1, PM + 1, PM, E, E + 1)
    order = (1, 2, 3, 0)
    W.add(pack_v())
    for n, kk in enumerate(order):
        a.wl(('q', kk), ('A', kk)); mf32(a, S[0], R[kk], QB + 4 * kk, S[0] if n else None); rd_kx(1, kk, kk)
        if n >= 1: W.go(2)
    W.flush()
    for n, kk in enumerate(order):
        a.wl(('A', kk)); mf32(a, S[1], R[kk], QB + 4 * kk, S[1] if n else None); rd_tr(('A', kk), R[kk], L_T + 2304, kk)
    for f in expcvt(S[0], PX): f()
    W.add(expcvt(S[1], PX + 2))
    for n, kk in enumerate(order):
        a.wl(('A', kk)); mf32(a, S[2], R[kk], QB + 4 * kk, S[2] if n else None)
        if n < 2: a.ds(('vx', n), 'ds_read_b128 %s, v%d offset:%d', vr(R[kk], 4), vT16, L_VX + 4096 * n)
        if n >= 1: W.go(2)
    W.flush()
    VXa, VXb, ONE = R[order[0]], R[order[1]], R[order[2]]
    a('v_mov_b64 %s, s[%d:%d]\nv_mov_b64 %s, s[%d:%d]', vr(ONE, 2), sONE, sONE + 1, vr(ONE + 2, 2), sONE, sONE + 1)
    LA, OA, OB, OP = QB, QB + 4, QB + 8, QB + 12
    W.add(expm())
    a.wl(('vx', 0)); mf32(a, OA, VXa, PX); W.go(1)
    a.wl(('vx', 1)); mf32(a, OB, VXb, PX); W.go(1)
    mf32(a, LA, ONE, PX); W.flush()
    def pv_m():
        mf16(a, LA, ONE, PM, LA); mf16(a, OA, VP, PM, OA); mf16(a, OB, VP2, PM, OB)
    a('s_add_u32 m0, s%d, %d', sW10, L_VX)
    pv_m()
    a('global_load_lds_dwordx4 v%d, s[%d:%d]', vT16, sNEXTV, sNEXTV + 1)
    a('s_add_u32 m0, m0, 0x1000\ns_add_u32 s%d, s%d, 0x1000\ns_addc_u32 s%d, s%d, 0', sNEXTV, sNEXTV, sNEXTV + 1, sNEXTV + 1)
    a('global_load_lds_dwordx4 v%d, s[%d:%d]', vT16, sNEXTV, sNEXTV + 1)
    def norm(check):
        a('v_rcp_f32 v%d, v%d', E, LA)
        if check: a('v_subrev_u32 v0, s%d, v%d\nv_cmp_lt_u32 vcc, s%d, v0', sLO, LA, sHI)
        for r in (OA, OB, OA + 2, OB + 2): a('v_pk_mul_f32 %s, %s, %s op_sel_hi:[1,0]', vr(r, 2), vr(r, 2), vr(E, 2))
        for i in range(4): a('v_cvt_pk_bf16_f32 v%d, v%d, v%d', OP + i, OA + i, OB + i)
    norm(True)
    a('s_cbranch_vccnz L_fb%s' % sfx)
    a('L_norm%s:' % sfx)
    a('s_mov_b64 exec, s[%d:%d]', sOM, sOM + 1)
    a.ds('ow', 'ds_write_b128 v%d, %s offset:%d', vOw, vr(OP, 4), L_O)
    a('s_mov_b64 exec, -1')
    OUT = ACCQ
    for r in range(OUT, OUT + 20, 2): a('v_mov_b64 %s, 0', vr(r, 2))
    if kvf:
        a('s_mov_b64 exec, 3\ns_waitcnt vmcnt(%d)\nL_kv2%s:\nv_cmp_gt_u32 vcc, s%d, v%d\ns_cbranch_vccnz L_kv%s\ns_mov_b64 exec, -1', 7 - me, sfx, sNEED, PO1, sfx)
    a.wl('ow'); a('s_barrier')
    stamp(a, opt, 5)
    for kb in range(2): a.ds(('o', kb), 'ds_read_b128 %s, v%d offset:%d', vr(MS + 4 * kb, 4), vL16, L_O + 1024 * kb)
    D, BS, RD = MS, MS + 8, WS
    if red: a.ds('bs', 'ds_read_b128 %s, v%d offset:%d', vr(BS, 4), vT16, L_BSEL)
    a('s_add_u32 s%d, s%d, 1', sSTEP, sSTEP)
    for f in ring_ptrs(sMO, sMXW if red else None, sMXR, 0): f()
    def post_pair(t, base):
        x, y = OUT + 4 * t, OUT + 4 * t + 4
        f = ops(a, 'v_pk_add_f32 %s, %s, %s\nv_pk_add_f32 %s, %s, %s', vr(x, 2), vr(x, 2), vr(x + 2, 2), vr(y, 2), vr(y, 2), vr(y + 2, 2))
        f += ops(a, 'v_cvt_pk_bf16_f32 v%d, v%d, v%d\nv_cvt_pk_bf16_f32 v%d, v%d, v%d', x + 2, x, y, x + 3, x + 1, y + 1)
        f += ops(a, 'v_and_or_b32 v%d, v%d, -2, s%d\nv_and_or_b32 v%d, v%d, -2, s%d', x + 2, x + 2, sTAG, x + 3, x + 3, sTAG)
        f += ops(a, 'global_store_dwordx2 v%d, %s, s[%d:%d]%s', vPA, vr(x + 2, 2), base, base + 1, own)
        return f
    for t in range(5):
        a.wl(('o', 0)); smf(a, OUT + 4 * t, MS, wo(t, 0)); W.go(2)
        a.wl(('o', 1)); smf(a, OUT + 4 * t, MS + 4, wo(t, 1))
        if t == 3: W.add(post_pair(0, sPARTA))
        W.go(2)
    W.flush()
    for f in post_pair(2, sPARTB): f()
    x = OUT + 16
    a('v_pk_add_f32 %s, %s, %s\nv_cvt_pk_bf16_f32 v%d, v%d, v%d\nv_and_or_b32 v%d, v%d, -2, s%d', vr(x, 2), vr(x, 2), vr(x + 2, 2), x + 2, x, x + 1, x + 2, x + 2, sTAG)
    a('global_store_dword v%d, v%d, s[%d:%d]%s', vPB, x + 2, sPARTA, sPARTA + 1, own)
    stamp(a, opt, 6)
    if red:
        a.wl('bs')
        if opt.get('ackA', 0) >= 0: a('s_waitcnt vmcnt(%d)', opt.get('ackA', 0))
        xdelay(a, opt.get('dA', 0))
        a('L_pa2%s:' % sfx)
        a('global_load_dwordx4 %s, v%d, s[%d:%d] sc1\nglobal_load_dwordx4 %s, v%d, s[%d:%d] offset:1024 sc1', vr(D, 4), vRd, sPARTA, sPARTA + 1, vr(D + 4, 4), vRd, sPARTA, sPARTA + 1)
        a('s_waitcnt vmcnt(1)')
        mf32(a, RD, D, BS)
        a('v_bitop3_b32 v0, v%d, v%d, s%d bitop3:0x7e\nv_bitop3_b32 v%d, v%d, v%d, s%d bitop3:0x7e', D, D + 1, sTAG, PW1, D + 2, D + 3, sTAG)
        a('s_waitcnt vmcnt(0)')
        mf32(a, RD, D + 4, BS, RD)
        a('v_bitop3_b32 v%d, v%d, v%d, s%d bitop3:0x7e\nv_bitop3_b32 v%d, v%d, v%d, s%d bitop3:0x7e', PO, D + 4, D + 5, sTAG, PO + 1, D + 6, D + 7, sTAG)
        a('v_or3_b32 v0, v0, v%d, v%d\nv_bitop3_b32 v0, v0, v%d, 1 bitop3:0xa8\nv_cmp_ne_u32 vcc, 0, v0', PW1, PO, PO + 1)
        a('v_pk_add_f32 %s, %s, %s\nv_add_f32 v%d, v%d, v%d', vr(RD, 2), vr(RD, 2), vr(RD + 2, 2), RD, RD, RD + 1)
        a('s_cbranch_vccnz L_pa%s' % sfx)
        stamp(a, opt, 7)
        a('v_mov_b32_dpp v%d, v%d quad_perm:[1,1,3,3] row_mask:0xf bank_mask:0xf', RD + 1, RD)
        a('v_cvt_pk_bf16_f32 v%d, v%d, v%d\nv_min_u32 v%d, -2, v%d', RD, RD, RD + 1, RD, RD)
        a('s_mov_b64 exec, s[%d:%d]', sPM, sPM + 1)
        if opt.get('pubord', 0) == 0:
            a('global_store_dword v%d, v%d, s[%d:%d]%s\nglobal_store_dword v%d, v%d, s[%d:%d] sc1\ns_mov_b64 exec, -1', vPub, RD, sMO, sMO + 1, own, vPub, RD, sMXW, sMXW + 1)
            if opt.get('ackB', 1) == 1: a('s_waitcnt vmcnt(1)')
        else:
            a('global_store_dword v%d, v%d, s[%d:%d] sc1\nglobal_store_dword v%d, v%d, s[%d:%d]%s\ns_mov_b64 exec, -1', vPub, RD, sMXW, sMXW + 1, vPub, RD, sMO, sMO + 1, own)
            if opt.get('ackB', 1) == 1: a('s_waitcnt vmcnt(0)')
    else:
        a.wl0()
    if opt.get('ackB', 1) == 2:
        a.lq = []; idle_work()
    a('s_barrier')
    if opt.get('ackB', 1) == 3:
        a.lq = []; idle_work()
    xdelay(a, opt.get('dB', 0))
    own_loads()
    if early: oth_loads()
    if opt.get('stamp'):
        a('s_waitcnt lgkmcnt(0)')
        a('s_lshl_b32 s%d, s%d, 2\ns_add_u32 s%d, s%d, s%d\ns_lshl_b32 s%d, s%d, 6\ns_add_u32 s%d, s%d, s%d\ns_lshl_b32 s%d, s%d, 5\ns_add_u32 s%d, s%d, %d', sT0, S_ROLE, sT0, sT0, S_W, sT0, sT0, sT0, sT0, sSTEP, sT0, sT0, sT0, sT0, 160 * 1024 - 2048 - 0 * STAMP)
        a('s_lshl_b32 s%d, s%d, 5\ns_lshl_b32 s%d, s%d, 9\ns_and_b32 s%d, s%d, 0x1e0\ns_add_u32 s%d, s%d, s%d\ns_add_u32 s%d, s%d, 30720', sT0, sSTEP, sT1, S_W, sT0, sT0, sT0, sT0, sT1, sT0, sT0)
        a('v_mov_b32 v0, s%d', sT0)
        for i in range(8): a('v_mov_b32 v%d, s%d', ACCQ + i, stamp_reg(i))
        a('ds_write_b128 v0, %s\nds_write_b128 v0, %s offset:16\ns_waitcnt lgkmcnt(0)', vr(ACCQ, 4), vr(ACCQ + 4, 4))
    if opt.get('ackB', 1) < 2:
        a.lq = []; idle_work()
    a('s_branch L_step%s' % sfx)
    a.lq = []
    def retry(name, code, body, back):
        a('L_%s%s:' % (name, sfx))
        a('s_add_u32 s%d, s%d, 1\ns_cmp_gt_u32 s%d, %d\ns_cbranch_scc1 L_bail%d', sCNT, sCNT, sCNT, SPIN, code)
        body()
        a('s_branch L_%s%s' % (back, sfx))
    retry('own', 5, lambda: (a('s_waitcnt lgkmcnt(0)'), own_loads(), a('s_waitcnt vmcnt(0)')), 'own2')
    retry('oth', 6, lambda: (a('s_waitcnt lgkmcnt(0)'), oth_loads(), a('s_waitcnt vmcnt(0)')), 'oth2')
    if red: retry('pa', 8, lambda: None, 'pa2')
    if kvf: retry('kv', 7, lambda: a('v_lshlrev_b32 v0, 8, v%d\nglobal_load_dword v%d, v0, s[%d:%d] sc1\ns_waitcnt vmcnt(0)', vL16, PO1, sKVF, sKVF + 1), 'kv2')
    a('L_fb%s:' % sfx)
    a('v_max3_f32 v0, v%d, v%d, v%d', S[0], S[0] + 1, S[0] + 2)
    for r in range(S[0] + 3, S[0] + 11, 2): a('v_max3_f32 v0, v0, v%d, v%d', r, r + 1)
    a('v_max_f32 v0, v0, v%d', S[0] + 11)
    a('v_mov_b32 v%d, v0\nv_permlane16_swap_b32 v0, v%d\nv_max_f32 v0, v0, v%d', E, E, E)
    a('v_mov_b32 v%d, v0\nv_permlane32_swap_b32 v0, v%d\nv_max_f32 v0, v0, v%d', E, E, E)
    for r in range(S[0], S[0] + 12): a('v_sub_f32 v%d, v%d, v0', r, r)
    for f in expcvt(S[0], PX) + expcvt(S[1], PX + 2) + expm(): f()
    mf32(a, LA, ONE, PX); mf32(a, OA, VXa, PX); mf32(a, OB, VXb, PX); pv_m()
    norm(False)
    a('s_branch L_norm%s' % sfx)
    a('L_last%s:' % sfx)
    for f in pack_v(): f()
    a('s_waitcnt vmcnt(0) lgkmcnt(0)\ns_barrier')
    if flg:
        a('s_mov_b64 exec, 1\nv_mov_b32 v0, 0\nv_mov_b32 v1, %d\nglobal_store_dword v0, v1, s[%d:%d] sc1\ns_waitcnt vmcnt(0)\ns_mov_b64 exec, -1', NSEG, sFLG, sFLG + 1)
    a('s_branch L_chain_end')
    a.lq = []; a.vq = []

def chain(a, opt):
    setup(a, opt)
    a('s_mov_b32 s%d, 0', sCNT)
    variants = [(f, me, k) for f in (1, 0) for me in (0, 1) for k in 'rig']
    a('s_cmp_eq_u32 s%d, 3\ns_cselect_b32 s%d, 2, 1\ns_cmp_lg_u32 s%d, 0\ns_cselect_b32 s%d, 0, s%d', S_W, sT0, sRED, sT0, sT0)
    a('s_mul_i32 s%d, s%d, 3\ns_add_u32 s%d, s%d, s%d\ns_cmp_eq_u32 s%d, 0\ns_cselect_b32 s%d, 6, 0\ns_add_u32 s%d, s%d, s%d', sT1, sME, sT0, sT0, sT1, S_FAST, sT1, sT0, sT0, sT1)
    for i in range(1, len(variants)): a('s_cmp_eq_u32 s%d, %d\ns_cbranch_scc1 L_var%d', sT0, i, i)
    for i, (f, me, k) in enumerate(variants):
        a('L_var%d:' % i)
        loop(a, f, me, k, opt)
    a('L_chain_end:')
    mark(a, opt, 5, 14, 15)
    if opt.get('stamp'):
        a('s_barrier\nv_lshrrev_b32 v0, 1, v%d\nds_read_b64 v[14:15], v0 offset:30720\ns_lshl_b32 s%d, s%d, 11\ns_add_u32 s%d, s%d, %d\nv_add_u32 v0, s%d, v0\ns_waitcnt lgkmcnt(0)\nglobal_store_dwordx2 v0, v[14:15], s[6:7]\ns_waitcnt vmcnt(0)', vT16, sT0, S_ROLE, sT0, sT0, STAMP, sT0)
    if opt.get('tm'):
        a('s_memrealtime s[94:95]\ns_memtime s[98:99]\ns_waitcnt lgkmcnt(0)\ns_sub_u32 s98, s98, s96\ns_lshl_b32 s98, s98, 8\ns_min_u32 s16, s16, 255\ns_or_b32 s16, s16, s98\ns_lshl_b32 s%d, s%d, 4\ns_add_u32 s%d, s%d, %d\nv_mov_b32 v0, s%d', sT0, S_ROLE, sT0, sT0, STAMP + 0x40000, sT0)
        a('v_mov_b32 v14, s90\nv_mov_b32 v15, s92\nv_mov_b32 v16, s94\nv_mov_b32 v17, s%d\nglobal_store_dwordx4 v0, v[14:17], s[6:7]\ns_waitcnt vmcnt(0)', sCNT)
    a('s_branch L_end')
```

```python
from asmgen import *
from common import *

def spin_guard(a, cnt, code):
    a('s_sub_u32 s%d, s%d, 1', cnt, cnt)
    a('s_cbranch_scc1 L_bail%d', code)

def prologue(a, opt):
    a('s_cmp_ge_u32 s2, 256\ns_cbranch_scc1 L_end')
    a('s_load_dwordx4 s[8:11], s[0:1], %d', KA_DBG)
    a('v_lshrrev_b32 v1, 6, v0\nv_readfirstlane_b32 s%d, v1', S_W)
    a('s_getreg_b32 s%d, hwreg(HW_REG_XCC_ID, 0, 4)', S_XCC)
    a('s_min_u32 s12, s%d, 7\ns_lshl_b32 s12, s12, 5\ns_lshr_b32 s13, s2, 3\ns_add_u32 s%d, s12, s13\ns_mov_b32 s%d, 0', S_XCC, S_ROLE, S_VER)
    if opt.get('badguess'): a('s_xor_b32 s13, s2, 5\ns_and_b32 s13, s13, 31\ns_add_u32 s%d, s12, s13', S_ROLE)
    a('s_waitcnt lgkmcnt(0)')
    a('s_add_u32 s6, s10, 0x3fffff\ns_addc_u32 s7, s11, 0\ns_and_b32 s6, s6, 0xffc00000\ns_mov_b32 s%d, 1', S_FAST)
    mark(a, opt, 0, 2, 3, True)
    a('L_dispatch:')

def arrive1(a, va, vb):
    L = a.label('L_ar')
    a('s_or_b32 s96, s%d, s%d\ns_cbranch_scc1 %s', S_W, S_VER, L)
    a('v_mbcnt_lo_u32_b32 v%d, -1, 0\nv_mbcnt_hi_u32_b32 v%d, -1, v%d\ns_lshl_b32 s96, s2, 8\nv_lshl_add_u32 v%d, v%d, 2, s96\nv_mov_b32 v%d, 0', va, va, va, va, va, vb)
    a('global_store_dword v%d, v%d, s[6:7] sc1', va, vb)
    a(L + ':')

def arrive2(a, va, vd):
    L = a.label('L_ar')
    a('s_or_b32 s96, s%d, s%d\ns_cbranch_scc1 %s', S_W, S_VER, L)
    a('s_and_b32 s96, s%d, 31\ns_lshl_b32 s96, 1, s96\ns_lshl_b32 s97, s%d, 3\ns_mov_b64 exec, 1', S_ROLE, S_XCC)
    a('v_mov_b32 v%d, s97\nv_mov_b32 v%d, s96\nv_mov_b32 v%d, 0x100', va, vd, vd + 1)
    a('global_atomic_add_x2 %s, v%d, %s, s[8:9] offset:%d sc0\ns_mov_b64 exec, -1', vr(vd, 2), va, vr(vd, 2), D_XCC * 4)
    a(L + ':')

def verify(a, opt, vd, t, lds):
    L = a.label('L_vf'); L1 = a.label('L_vf'); L2 = a.label('L_vf'); L3 = a.label('L_vf')
    a('s_cmp_lg_u32 s%d, 0\ns_cbranch_scc1 %s', S_VER, L)
    a('s_cmp_lg_u32 s%d, 0\ns_cbranch_scc1 %s', S_W, L1)
    a('s_mov_b64 exec, 0xffff\nv_mbcnt_lo_u32_b32 v%d, -1, 0\nv_lshlrev_b32 v%d, 3, v%d\ns_mov_b32 s96, %d', t + 2, t + 2, t + 2, SPIN)
    a(L2 + ':\nglobal_load_dwordx2 %s, v%d, s[8:9] offset:%d sc1', vr(t, 2), t + 2, D_XCC * 4)
    spin_guard(a, 96, 1)
    a('s_waitcnt vmcnt(0)\nv_lshrrev_b32 v%d, 8, v%d', t + 3, t + 1)
    for sh in (1, 2, 4, 8): a('v_add_u32_dpp v%d, v%d, v%d row_shr:%d row_mask:0xf bank_mask:0xf bound_ctrl:0', t + 3, t + 3, t + 3, sh)
    a('v_readlane_b32 s97, v%d, 15\ns_cmp_lt_u32 s97, 256\ns_cbranch_scc1 %s', t + 3, L2)
    a('v_cmp_eq_u32 vcc, -1, v%d\nv_cmp_eq_u32 s[98:99], 0x2000, v%d' % (t, t + 1) if False else 'v_cmp_eq_u32 vcc, -1, v%d\ns_mov_b32 s98, vcc_lo\nv_cmp_eq_u32 vcc, 0x2000, v%d\ns_and_b32 s98, s98, vcc_lo' % (t, t + 1))
    a('s_mov_b32 s97, -1\ns_cmp_eq_u32 s98, 0xff\ns_cbranch_scc1 %s', L3)
    a('v_readlane_b32 s97, v%d, s%d\nv_readlane_b32 s98, v%d, s%d\nv_readlane_b32 s99, v%d, 0', t + 3, S_XCC, t + 1, S_XCC, vd + 1)
    a('s_lshr_b32 s98, s98, 8\ns_lshr_b32 s99, s99, 8\ns_sub_u32 s97, s97, s98\ns_add_u32 s97, s97, s99')
    a('v_readlane_b32 s98, v%d, 0\nv_readlane_b32 s99, v%d, 1\ns_xor_b32 s98, s98, 32\ns_xor_b32 s99, s99, 64\ns_or_b32 s98, s98, s99', t + 3, t + 3)
    a('s_cmp_eq_u32 s98, 0\ns_cselect_b32 s98, 0x10000, 0\ns_or_b32 s97, s97, s98')
    a(L3 + ':\nv_mov_b32 v%d, %d\nv_mov_b32 v%d, s97\nds_write_b32 v%d, v%d\ns_waitcnt lgkmcnt(0)\ns_mov_b64 exec, -1', t, lds, t + 1, t, t + 1)
    a(L1 + ':\ns_barrier\nv_mov_b32 v%d, %d\nds_read_b32 v%d, v%d\ns_waitcnt lgkmcnt(0)\nv_readfirstlane_b32 s97, v%d\ns_barrier', t, lds, t + 1, t, t + 1)
    a('s_mov_b32 s%d, 1\ns_cmp_lg_u32 s97, -1\ns_cbranch_scc1 L_redo', S_VER)
    a(L + ':')
    a.lq = []

def redo(a, opt):
    a('L_redo:\ns_waitcnt vmcnt(0) lgkmcnt(0)')
    a('s_and_b32 s%d, s97, 0xffff\ns_lshr_b32 s%d, s97, 16\ns_mov_b32 s%d, 2', S_ROLE, S_FAST, S_VER)
    a('v_mbcnt_lo_u32_b32 v0, -1, 0\nv_mbcnt_hi_u32_b32 v0, -1, v0\ns_lshl_b32 s96, s%d, 6\nv_add_u32 v0, s96, v0', S_W)
    a('s_branch L_dispatch')

def probe_parity(a):
    a('s_mov_b64 exec, 1\nv_mov_b32 v2, 0')
    a('s_add_u32 s20, s6, %d\ns_addc_u32 s21, s7, 0', PROBE)
    a('s_mov_b32 s22, -1\ns_mov_b32 s23, -1')
    for i in range(4):
        for p in (0, 1):
            a('v_mov_b32 v1, %d', i * 16384 + p * 8192 + i * 1024)
            a('global_store_dword v1, v2, s[20:21] sc1\ns_waitcnt vmcnt(0)')
            a('s_memtime s[24:25]\ns_waitcnt lgkmcnt(0)')
            a('global_load_dword v3, v1, s[20:21] sc1\ns_waitcnt vmcnt(0)')
            a('s_memtime s[26:27]\ns_waitcnt lgkmcnt(0)')
            a('s_sub_u32 s24, s26, s24\ns_min_u32 s%d, s%d, s24', 22 + p, 22 + p)
    a('s_cmp_lt_u32 s23, s22\ns_cselect_b32 s22, 2, 1')
    a('s_lshr_b32 s23, s%d, 1\ns_lshl_b32 s23, s23, 2\nv_mov_b32 v1, s23\nv_mov_b32 v2, s22\nglobal_store_dword v1, v2, s[8:9] offset:%d sc1\ns_waitcnt vmcnt(0)', S_VER, D_PAR * 4)
    a('s_mov_b64 exec, -1')

def get_parity(a, vt=1, vt2=2, st=15):
    L = a.label('L_par')
    a('s_lshr_b32 s%d, s%d, 1\ns_lshl_b32 s%d, s%d, 2\nv_mov_b32 v%d, s%d\ns_mov_b32 s%d, %d', st, S_VER, st, st, vt, st, st, SPIN)
    a(L + ':')
    a('global_load_dword v%d, v%d, s[8:9] offset:%d sc1', vt2, vt, D_PAR * 4)
    spin_guard(a, st, 2)
    a('s_waitcnt vmcnt(0)\nv_readfirstlane_b32 s%d, v%d\ns_cmp_eq_u32 s%d, 0\ns_cbranch_scc1 %s', S_PAR, vt2, S_PAR, L)
    a('s_sub_u32 s%d, s%d, 1', S_PAR, S_PAR)

def epilogue(a, ncodes=16):
    for c in range(1, ncodes):
        a('L_bail%d:\ns_mov_b32 s12, %d\ns_branch L_bail', c, c)
    a('L_bail:\ns_mov_b64 exec, 1\nv_mov_b32 v2, s12\nv_mov_b32 v1, %d\nglobal_store_dword v1, v2, s[8:9] sc1\ns_waitcnt vmcnt(0)', D_ERR * 4)
    a('L_end:\ns_endpgm')

def mark(a, opt, word, va, vb, neg=False):
    if not opt.get('mark'): return
    L = a.label('L_mk')
    a('s_cmp_lg_u32 s%d, 0\ns_cbranch_scc1 %s', S_W, L)
    a('s_memrealtime s[98:99]\ns_waitcnt lgkmcnt(0)')
    if neg: a('s_not_b32 s98, s98')
    a('s_mov_b64 s[96:97], exec\ns_mov_b64 exec, 1\nv_mov_b32 v%d, %d\nv_mov_b32 v%d, s98\nglobal_atomic_umax v%d, v%d, s[8:9]\ns_mov_b64 exec, s[96:97]', va, word * 4, vb, va, vb)
    a(L + ':')
```

```python
import sys, re
sys.path.insert(0, 'lib'); sys.path.insert(0, 'work')
from asmgen import *
from common import *
import g_pro, g_chain, g_bulk, g_parta
NAME = 'concat_heads__grouped_kv_mqa__memory_aug_recurrent_mem_tr__prompt_kernel'
def build(opt):
    a = Asm()
    if opt.get('tm'): a('s_memrealtime s[90:91]')
    g_pro.prologue(a, opt)
    if opt.get('forceslow'): a('s_mov_b32 s%d, 0', S_FAST)
    a('s_cmp_lt_u32 s%d, 64\ns_cbranch_scc1 L_chain', S_ROLE)
    a('s_cmp_lg_u32 s%d, 64\ns_cbranch_scc1 L_noprobe\ns_cmp_lg_u32 s%d, 0\ns_cbranch_scc1 L_noprobe', S_ROLE, S_W)
    g_pro.probe_parity(a)
    a('L_noprobe:')
    if opt.get('nokv'):
        g_pro.arrive1(a, 14, 15); a('s_waitcnt vmcnt(0)'); g_pro.arrive2(a, 12, 14); g_pro.verify(a, opt, 14, 16, 0)
        a('s_branch L_end')
    else:
        B = g_bulk
        g_pro.arrive1(a, 14, 15)
        B.lane_regs(a)
        if opt.get('noA'): a('s_mov_b32 s%d, 0', B.sTASK)
        a('s_cmp_lt_u32 s%d, 128\ns_cbranch_scc1 L_r_qa\ns_cmp_lt_u32 s%d, 160\ns_cbranch_scc1 L_r_k\ns_cmp_lt_u32 s%d, 192\ns_cbranch_scc1 L_r_v', S_ROLE, S_ROLE, S_ROLE)
        a('s_sub_u32 s%d, s%d, 192\ns_lshr_b32 s%d, s%d, 5\ns_and_b32 s%d, s%d, 31\ns_cmp_lt_u32 s%d, 20\ns_cbranch_scc1 L_orole', B.sT0, S_ROLE, B.sSEG, B.sT0, B.sH, B.sT0, B.sH)
        a('L_r_a:')
        a('s_waitcnt vmcnt(0)')
        g_pro.arrive2(a, B.vA, 14)
        g_pro.verify(a, opt, 14, 16, B.L_Q)
        a('s_branch L_queue')
        a('L_r_k:'); B.b_role(a, B.K_K, KA_WK, 128)
        a('L_r_v:'); B.b_role(a, B.K_V, KA_WV, 160)
        a('L_r_qa:'); B.b_role(a, B.K_QA, KA_WQ, 64)
        B.g_load(a, opt)
        B.kv_loops(a, opt)
        B.qa_role(a, opt, 2)
        B.o_role(a, opt, 2)
        if opt.get('noA'):
            a('L_queue:\nL_aq:\nL_ao:\nL_akv:\ns_branch L_done')
        else:
            g_parta.queue(a)
            g_parta.a_loops(a)
            g_parta.att(a, opt)
        a('L_done:')
        g_pro.mark(a, opt, 8, 2, 3)
        if opt.get('tm'):
            a('s_memrealtime s[94:95]\ns_waitcnt lgkmcnt(0)\ns_lshl_b32 s12, s%d, 4\ns_add_u32 s12, s12, %d\nv_mov_b32 v0, s12', S_ROLE, STAMP + 0x40000)
            a('v_mov_b32 v14, s90\nv_mov_b32 v15, s90\nv_mov_b32 v16, s94\nv_mov_b32 v17, 0\nglobal_store_dwordx4 v0, v[14:17], s[6:7]\ns_waitcnt vmcnt(0)')
        a('s_branch L_end')
    g_pro.redo(a, opt)
    g_pro.epilogue(a)
    a('L_chain:')
    g_chain.chain(a, opt)
    if opt.get('nocomm'):
        out = []; inl = False; ph = -1
        for l in a.lines:
            if l.startswith('L_var0:'): inl = True
            if l.startswith('L_chain_end:'): inl = False
            t = l.strip()
            if t.startswith('; PH'): ph = int(t[5:])
            if t.startswith('L_var'): ph = -1
            if inl:
                nc = opt['nocomm'] + opt.get('ph', {}).get(ph, '')
                if 'w' in nc and t.startswith('s_waitcnt'): continue
                if 's' in nc and re.match(r's_(add|addc|xor|and|lshl|lshr|mul|bfe|mov|min)', t) and not t.startswith('s_add_u32 s14, s14, 1'): continue
                if 'g' in nc and t.startswith('global_'): continue
                if 'D' in nc and t.startswith('global_load_lds'): continue
                if 'g' in nc and t.startswith('s_cbranch_vccnz'): continue
                if 'm' in nc and t.startswith('v_smfmac'): continue
                if 'd' in nc and t.startswith('v_mfma'): continue
                if 'l' in nc and t.startswith('ds_'): continue
                if 'b' in nc and t.startswith('s_barrier'): continue
                if 'v' in nc and re.match(r'v_(?!smfmac|mfma)', t): continue
            out.append(l)
        a.lines = out
    hdr = ''.join(l for l in open('cdna_kernels/' + NAME[:-7] + '.s.ref').readlines()[:18]) if opt.get('final') else ''
    return kernel_wrap(NAME, a.text(fix=True), '; @launch grid=(256,1,1) block=(256,1,1) lds=163840', vgpr=512, sgpr=102, accum=256, header=hdr)
if __name__ == '__main__':
    opt = eval(sys.argv[2]) if len(sys.argv) > 2 else {}
    open(sys.argv[1], 'w').write(build(opt))
```

```python
from asmgen import *
from common import *
from g_pro import spin_guard, get_parity, mark, arrive1, arrive2, verify
import struct
def f2u(x): return struct.unpack('<I', struct.pack('<f', x))[0]
vIdx, vL16, vT16, vT4, vPA, vPB, vRd, vPub, vTw, vTr, vOw = range(1, 12)
ONE, BSEL0, ACCQ, ACCK, ACCV, MA, PW1, PO1, MB, X = 12, 16, 20, 28, 36, 44, 64, 65, 66, 86
vT8, vKV, vVV, vT16B, vTwk = 102, 103, 104, 18, 19
NEG, VO, PM = 106, 108, 110
CAR = 16

def wq(b, H): return 256 + (2 * b + H) * 8
def wk(b, H):
    i = 2 * b + H
    return 256 + 160 + i * 8 if i < 12 else 112 + (i - 12) * 8
def wv_addr(op, half):
    off = L_WV + op * 8192 + half * 4096
    return (vT16, off) if off < 65536 else (vT16B, off - 65536)
def wo(t, kb): return 176 + (2 * t + kb) * 8
L_M0, L_M1, L_TQ, L_TK, L_O, L_KV, L_WV, L_BSEL, L_MISC = 0, 5120, 10240, 12544, 5120, 14848, 47616, 129536, 133632
sME, sH, sU, sSTEP, sTAG, sCNT, sT0, sT1, sRED = 11, 12, 13, 14, 15, 16, 17, 18, 19
sSRD = 20
sROW = 24
sKVO, sW10, sNEXTV = 20, 21, 22
sPART, sXW, sMO, sMXW, sMXR, sMOZ, sMXZ, sNEXT, sCUR, sFLG, sSCALE = 24, 26, 28, 30, 32, 34, 36, 38, 40, 42, 44
sMOB, sMXB, sSEGB, sPB, sLO, sHI, sKVF, sPM = 46, 48, 50, 52, 54, 55, 56, 58
sPTR = 60
sNEED, sXR, sHIM, sXZ, sCURP = 60, 62, 61, 66, 68
sOM, sSEGM, sXB = 70, 100, 88

def smf(a, d, A, B): a('v_smfmac_f32_16x16x64_bf16 %s, %s, %s, v%d', vr(d, 4), vr(A, 4), xr(B, 8), vIdx)
def mf32(a, d, A, B, C=None): a('v_mfma_f32_16x16x32_bf16 %s, %s, %s, %s', vr(d, 4), xr(A, 4), xr(B, 4), '0' if C is None else vr(C, 4))
def mf16(a, d, A, B, C=None): a('v_mfma_f32_16x16x16_bf16 %s, %s, %s, %s', vr(d, 4), xr(A, 2), xr(B, 2), '0' if C is None else vr(C, 4))
def rowconst(p, e): return 32 * (p >> 2) + 8 * (p & 1) + 2 * ((p >> 1) & 1) + e

class Loader:
    RING = [20, 36, 52]
    TMP = 94
    def __init__(self, a): self.a = a; self.pend = []; self.n = 0
    def batch(self, voff, fin):
        a = self.a
        if len(self.pend) == len(self.RING): self.retire()
        z = self.RING[self.n % len(self.RING)]; tag = ('w', self.n); self.n += 1
        for q in range(16): a.vm(tag, 'buffer_load_dword v%d, v%d, s[%d:%d], s%d offen', z + q, voff, sSRD, sSRD + 3, sROW + q)
        self.pend.append((tag, z, fin))
    def retire(self):
        tag, z, fin = self.pend.pop(0)
        self.a.wv(tag); fin(z)
    def drain(self):
        while self.pend: self.retire()

def put(a, dst, Xr, Y, sel):
    if dst < 256: a('v_perm_b32 v%d, v%d, v%d, %s', dst, Y, Xr, sel)
    else:
        t = Loader.TMP + (dst & 3)
        a('v_perm_b32 v%d, v%d, v%d, %s\nv_accvgpr_write_b32 a%d, v%d', t, Y, Xr, sel, dst - 256, t)

def set_srd(a, ptr, off_s, size):
    a('s_add_u32 s%d, s%d, s%d\ns_addc_u32 s%d, s%d, 0\ns_and_b32 s%d, s%d, 0xffff', sSRD, ptr, off_s, sSRD + 1, ptr + 1, sSRD + 1, sSRD + 1)
    a('s_sub_u32 s%d, %d, s%d\ns_mov_b32 s%d, 0x20000', sSRD + 2, size, off_s, sSRD + 3)

def ops(a, text, *args):
    if args: text = text % args
    ls = []
    for l in text.split('\n'):
        if not l.strip(): continue
        if l.startswith('s_addc'): ls[-1] += '\n' + l
        else: ls.append(l)
    return [(lambda l=l: a(l)) for l in ls]

def seg_ptr(a, dst, delta):
    return ops(a, 's_add_u32 s%d, s%d, %d\ns_lshr_b32 s%d, s%d, 1\ns_xor_b32 s%d, s%d, s%d\ns_and_b32 s%d, s%d, 1\ns_lshl_b32 s%d, s%d, 13', sT0, sSTEP, delta, sT1, sT0, sT1, sT1, S_PAR, sT1, sT1, sT1, sT1) + \
        ops(a, 's_lshl_b32 s%d, s%d, 20\ns_add_u32 s%d, s%d, s%d\ns_add_u32 s%d, s%d, s%d\ns_addc_u32 s%d, s%d, 0', sT0, sT0, sT0, sT0, sT1, dst, sSEGB, sT0, dst + 1, sSEGB + 1) + \
        ops(a, 's_add_u32 s%d, s%d, 0x4000\ns_addc_u32 s%d, s%d, 0', sNEXTV, dst, sNEXTV + 1, dst + 1)

def kv_dma(a, base_s, part):
    p = sNEXTV if part else sNEXT
    f = ops(a, 's_add_u32 m0, s%d, s%d', base_s, sW10)
    if part: f += ops(a, 's_add_u32 m0, m0, 0x2000')
    f += ops(a, 'global_load_lds_dwordx4 v%d, s[%d:%d]', vT16, p, p + 1)
    f += ops(a, 's_add_u32 m0, m0, 0x1000\ns_add_u32 s%d, s%d, 0x1000\ns_addc_u32 s%d, s%d, 0', p, p, p + 1, p + 1)
    f += ops(a, 'global_load_lds_dwordx4 v%d, s[%d:%d]', vT16, p, p + 1)
    return f

def setup(a, opt):
    vLane, vN, vG, vA, vB, vH, vg1, vC, vM0, vRowG, vOffW, vOffB, vOffO, vSel5 = range(72, 86)
    vNeg, vArr, vVer = 86, 88, 90
    arrive1(a, vA, vB)
    a('s_lshr_b32 s%d, s%d, 5\ns_and_b32 s%d, s%d, 31', sME, S_ROLE, sH, S_ROLE)
    a('s_load_dwordx8 s[%d:%d], s[0:1], %d\ns_load_dwordx2 s[%d:%d], s[0:1], %d', sPTR, sPTR + 7, KA_MEM0, sPTR + 8, sPTR + 9, KA_WO)
    pM, pQ, pK, pV, pO = sPTR, sPTR + 2, sPTR + 4, sPTR + 6, sPTR + 8
    a('v_lshlrev_b32 v%d, 4, v0\nv_lshlrev_b32 v%d, 3, v0\nv_lshlrev_b32 v%d, 2, v0\nv_add_u32 v%d, 0x1000, v%d', vT16, vT8, vT4, vT4, vT4)
    a('v_and_b32 v%d, 63, v0\nv_and_b32 v%d, 15, v0\nv_lshlrev_b32 v%d, 4, v%d\nv_bfe_u32 v%d, v0, 4, 2', vLane, vN, vL16, vLane, vG)
    a('v_lshrrev_b32 v%d, 5, v%d\nv_and_b32 v%d, 1, v%d', vH, vLane, vg1, vG)
    a('v_add_u32 v%d, 0x10000, v%d', vT16B, vT16)
    sSelLo, sSelHi, sOwn5, sOth5, sHoff = 72, 73, 74, 75, 76
    sI0, sI1 = 78, 80
    a('v_lshlrev_b32 v%d, 4, v%d\nv_lshl_add_u32 v%d, v%d, 2, v%d', vA, vH, vRowG, vg1, vA)
    a('s_lshl_b32 s%d, s%d, 6', sT0, S_W)
    a('v_lshlrev_b32 v%d, 13, v%d\nv_lshl_add_u32 v%d, v%d, 2, v%d\nv_add_u32 v%d, s%d, v%d', vA, vRowG, vA, vN, vA, vOffW, sT0, vA)
    for p in range(8):
        for e in range(2): a('s_mov_b32 s%d, %d', sROW + 2 * p + e, rowconst(p, e) * 8192)
    a('s_mov_b32 s%d, 0x05040100\ns_mov_b32 s%d, 0x07060302', sSelLo, sSelHi)
    a('s_mul_i32 s%d, s%d, 5\ns_sub_u32 s%d, 5, s%d\ns_lshl_b32 s%d, s%d, 8', sOwn5, sME, sOth5, sOwn5, sHoff, sH)
    a('s_waitcnt lgkmcnt(0)')
    ld = Loader(a)
    lo, hi = 's%d' % sSelLo, 's%d' % sSelHi
    def blockoff(b):
        p = b % 5; hs = sOwn5 if b < 5 else sOth5
        if p < 4: a('s_xor_b32 s%d, s%d, %d\ns_add_u32 s%d, s%d, s%d', sT0, S_W, p, sT0, sT0, hs)
        else: a('s_add_u32 s%d, s%d, 4', sT0, hs)
        a('s_lshl_b32 s%d, s%d, 19\nv_add_u32 v%d, s%d, v%d', sT0, sT0, vOffB, sT0, vOffW)
    def fin_reg(ra, rb):
        def f(z):
            for p in range(8):
                put(a, ra + p, z + 2 * p, z + 2 * p + 1, lo); put(a, rb + p, z + 2 * p, z + 2 * p + 1, hi)
        return f
    def fin_v(b):
        def f(z):
            for H, sel in ((0, lo), (1, hi)):
                a.wl0()
                for p in range(8): put(a, Loader.TMP + p, z + 2 * p, z + 2 * p + 1, sel)
                for half in range(2):
                    bs, off = wv_addr(2 * b + H, half)
                    a.ds('x', 'ds_write_b128 v%d, %s offset:%d', bs, vr(Loader.TMP + 4 * half, 4), off)
        return f
    def addresses():
        a('v_bfe_u32 v%d, v%d, 1, 1\nv_mul_u32_u24 v%d, 0xaaaa, v%d\nv_add_u32 v%d, 0x4444, v%d', vA, vLane, vA, vA, vIdx, vA)
        a('s_lshl_b32 s%d, s%d, 15\ns_lshl_b32 s%d, s%d, 6\ns_add_u32 s%d, s%d, s%d', sT0, S_W, sT1, sH, sT0, sT0, sT1)
        a('v_and_b32 v%d, 12, v%d\nv_add_u32 v%d, v%d, v%d\nv_lshlrev_b32 v%d, 11, v%d', vA, vN, vA, vA, vG, vA, vA)
        a('v_and_b32 v%d, 3, v%d\nv_lshl_add_u32 v%d, v%d, 4, v%d\nv_add_u32 v%d, s%d, v%d', vB, vN, vA, vB, vA, vPA, sT0, vA)
        a('s_lshl_b32 s%d, s%d, 13\ns_add_u32 s%d, s%d, s%d\ns_add_u32 s%d, s%d, 0x20000', sT0, S_W, sT0, sT0, sT1, sT0, sT0)
        a('v_lshlrev_b32 v%d, 11, v%d\nv_lshl_add_u32 v%d, v%d, 2, v%d\nv_add_u32 v%d, s%d, v%d', vA, vG, vA, vN, vA, vPB, sT0, vA)
        a('s_lshl_b32 s%d, s%d, 5\ns_add_u32 s%d, s%d, s%d\ns_cmp_lt_u32 s%d, 80\ns_cselect_b32 s%d, 1, 0\ns_cselect_b32 s%d, s%d, 0', sU, S_W, sU, sU, sH, sU, sRED, sU, sU)
        a('v_and_b32 v%d, 3, v%d\nv_lshl_add_u32 v%d, v%d, 2, v%d\nv_lshlrev_b32 v%d, 6, v%d', vA, vLane, vA, vG, vA, vA, vA)
        a('v_lshrrev_b32 v%d, 2, v%d\nv_lshl_add_u32 v%d, v%d, 4, v%d\ns_lshl_b32 s%d, s%d, 11\nv_add_u32 v%d, s%d, v%d', vB, vN, vA, vB, vA, sT0, sU, vRd, sT0, vA)
        a('v_bfe_u32 v%d, v%d, 1, 2\nv_lshlrev_b32 v%d, 4, v%d\nv_lshl_add_u32 v%d, v%d, 2, v%d', vA, vN, vA, vA, vA, vG, vA)
        a('v_bfe_u32 v%d, v%d, 1, 1\nv_lshl_add_u32 v%d, v%d, 1, v%d\nv_lshlrev_b32 v%d, 4, v%d\nv_lshl_add_u32 v%d, v%d, 3, v%d', vB, vN, vB, vH, vB, vB, vB, vB, vg1, vB)
        a('v_bfe_u32 v%d, v%d, 2, 1\nv_lshl_add_u32 v%d, v%d, 2, v%d', vC, vN, vB, vC, vB)
        a('s_cmp_eq_u32 s%d, 2\ns_cselect_b64 vcc, -1, 0\nv_cndmask_b32 v%d, v%d, v%d, vcc', S_W, vC, vA, vB)
        a('s_lshl_b32 s%d, s%d, 6\nv_add_u32 v%d, s%d, v%d', sT0, sU, vPub, sT0, vC)
        a('s_and_b32 s%d, s%d, 3\ns_mul_i32 s%d, s%d, 2560\ns_lshr_b32 s%d, s%d, 2\ns_lshl_b32 s%d, s%d, 5\ns_add_u32 s%d, s%d, s%d', sT0, sU, sT0, sT0, sT1, sU, sT1, sT1, sT0, sT0, sT1)
        a('s_mul_i32 s%d, s%d, 640\ns_add_u32 s%d, s%d, s%d', sT1, sME, sT0, sT0, sT1)
        a('v_bfe_u32 v%d, v%d, 4, 1\nv_mul_u32_u24 v%d, 1280, v%d\nv_bfe_u32 v%d, v%d, 5, 1\nv_lshl_add_u32 v%d, v%d, 4, v%d', vA, vC, vA, vA, vB, vC, vA, vB, vA)
        a('v_and_b32 v%d, 15, v%d\nv_add3_u32 v%d, v%d, v%d, s%d', vB, vC, vA, vA, vB, sT0)
        a.vm('m0', 'global_load_dword v%d, v%d, s[%d:%d]', vM0, vA, pM, pM + 1)
        a('v_and_b32 v%d, 12, v%d\nv_and_b32 v%d, 1, v%d\nv_lshl_add_u32 v%d, v%d, 1, v%d\nv_bfe_u32 v%d, v%d, 1, 1\nv_add_u32 v%d, v%d, v%d', vA, vN, vB, vN, vA, vB, vA, vB, vN, vA, vA, vB)
        a('v_cndmask_b32 v%d, v%d, v%d, vcc', vA, vN, vA)
        a('v_mov_b32 v%d, 0x3f80\nv_mov_b32 v%d, 0x3f800000', vB, vC)
        for r in range(4):
            a('v_cmp_eq_u32 vcc, %d, v%d\nv_cndmask_b32 v%d, 0, v%d, vcc', 2 * r, vA, vVer + r, vB)
            a('v_cmp_eq_u32 vcc, %d, v%d\nv_cndmask_b32 v%d, v%d, v%d, vcc', 2 * r + 1, vA, vVer + r, vVer + r, vC)
            a('v_mov_b32 v%d, 0x3f803f80', ONE + r)
        a('ds_write_b128 v%d, %s offset:%d\ns_waitcnt lgkmcnt(0)', vT16B, vr(vVer, 4), L_BSEL - 65536)
        a('s_lshl_b32 s%d, s%d, 6\nv_mul_u32_u24 v%d, 576, v%d\nv_lshl_add_u32 v%d, v%d, 2, v%d\nv_add_u32 v%d, s%d, v%d', sT0, S_W, vA, vG, vA, vN, vA, vTw, sT0, vA)
        a('v_add_u32 v%d, %d, v%d\nv_add_u32 v%d, %d, v%d', vTwk, L_TK, vTw, vTw, L_TQ, vTw)
        a('v_mov_b64 %s, -1\nv_mov_b64 %s, 0', vr(NEG, 2), vr(PM, 2))
        a('v_lshrrev_b32 v%d, 2, v%d\nv_and_b32 v%d, 1, v%d\nv_lshl_add_u32 v%d, v%d, 1, v%d', vA, vN, vB, vN, vC, vA, vB)
        a('v_mul_u32_u24 v%d, 288, v%d\nv_lshl_add_u32 v%d, v%d, 4, v%d', vC, vC, vTr, vG, vC)
        a('s_lshl_b32 s%d, s%d, 9\nv_lshlrev_b32 v%d, 1, v%d\nv_add_u32 v%d, v%d, v%d\nv_lshl_add_u32 v%d, v%d, 1, v%d\nv_lshlrev_b32 v%d, 4, v%d', sT0, S_W, vA, vA, vA, vA, vg1, vA, vA, vB, vA, vA)
        a('v_lshl_add_u32 v%d, v%d, 8, v%d\nv_add_u32 v%d, s%d, v%d', vA, vH, vA, vOw, sT0, vA)
        c = f2u(128 ** -0.5 * 1.4426950408889634)
        a('s_mov_b32 s%d, 0x%x\ns_mov_b32 s%d, 0x%x', sSCALE, c, sSCALE + 1, c)
        a('s_mov_b32 s%d, 0x%x\ns_mov_b32 s%d, 0x%x', sLO, f2u(2.0 ** -60), sHI, f2u(2.0 ** 60) - f2u(2.0 ** -60))
        a('s_mov_b32 s%d, 0x00550055\ns_mov_b32 s%d, 0x00550055\ns_mov_b32 s%d, 0x33333333\ns_mov_b32 s%d, 0x33333333', sPM, sPM + 1, sOM, sOM + 1)
    def base(dst, off): a('s_add_u32 s%d, s%d, %d\ns_add_u32 s%d, s6, s%d\ns_addc_u32 s%d, s7, 0', sT0, sT0, off, dst, sT0, dst + 1)
    def rings():
        if opt.get('par') is None: get_parity(a, vA, vB, sCNT)
        else: a('s_mov_b32 s%d, %d', S_PAR, opt['par'])
        a('s_mul_i32 s%d, s%d, %d', sT0, sME, 2 * 163840); base(sPB, PART)
        a('s_lshl_b32 s%d, s%d, 15', sT0, sME); base(sMOB, MO)
        a('s_lshl_b32 s%d, s%d, 13', sT0, S_PAR); base(sMXB, MX)
        a('s_lshl_b32 s%d, s%d, 15', sT0, sH); base(sSEGB, SEG)
        a('s_lshl_b32 s%d, s%d, 14\ns_lshl_b32 s%d, s%d, 12\ns_add_u32 s%d, s%d, s%d', sT0, sH, sT1, sME, sT0, sT0, sT1); base(sSEGM, SEGM)
        a('s_cmp_eq_u32 s%d, 0\ns_cselect_b32 s%d, %d, 0\ns_sub_u32 s%d, s%d, s%d\ns_subb_u32 s%d, s%d, 0', sME, sT0, L_TQ, sSEGM, sSEGM, sT0, sSEGM + 1, sSEGM + 1)
        a('s_lshr_b32 s%d, s%d, 1\ns_lshl_b32 s%d, s%d, 14\ns_and_b32 s%d, s%d, 1\ns_lshl_b32 s%d, s%d, 12\ns_add_u32 s%d, s%d, s%d', sT0, sH, sT0, sT0, sT1, sH, sT1, sT1, sT0, sT0, sT1)
        a('s_lshl_b32 s%d, s%d, 13\ns_add_u32 s%d, s%d, s%d', sT1, S_PAR, sT0, sT0, sT1); base(sXB, XCH)
        a('s_lshl_b32 s%d, s%d, 5\ns_add_u32 s%d, s%d, s%d\ns_lshl_b32 s%d, s%d, 7', sT0, sME, sT0, sT0, sH, sT0, sT0); base(sFLG, F_KM * 128)
        a('s_lshl_b32 s%d, s%d, 7', sT0, sH); base(sKVF, F_K * 128)
        for r in range(4): a('v_mov_b32 v%d, -1', vVer + r)
        for slot in range(2):
            a('s_add_u32 s%d, s%d, %d\ns_addc_u32 s%d, s%d, 0', sI0, sPB, slot * 163840, sI0 + 1, sPB + 1)
            a('global_store_dwordx4 v%d, %s, s[%d:%d] sc1', vPA, vr(vVer, 4), sI0, sI0 + 1)
            a('global_store_dword v%d, v%d, s[%d:%d] sc1', vPB, vVer, sI0, sI0 + 1)
        for slot in range(4):
            a('s_lshl_b32 s%d, s%d, 18\ns_add_u32 s%d, s%d, %d\ns_add_u32 s%d, s%d, s%d\ns_addc_u32 s%d, s%d, 0', sT0, sME, sT0, sT0, slot << 19, sI0, sXB, sT0, sI0 + 1, sXB + 1)
            a('global_store_dwordx2 v%d, %s, s[%d:%d] sc1', vT8, vr(vVer, 2), sI0, sI0 + 1)
        L = a.label('L_ci')
        a('s_cmp_eq_u32 s%d, 0\ns_cbranch_scc1 %s', sRED, L)
        a('s_lshl_b32 s%d, s%d, 14\nv_min_u32 v%d, -2, v%d\ns_mov_b64 exec, s[%d:%d]', sT1, sME, vM0, vM0, sPM, sPM + 1)
        for slot in range(4):
            d = vM0 if slot == 0 else vVer
            a('s_add_u32 s%d, s%d, %d\ns_addc_u32 s%d, s%d, 0', sI0, sMOB, slot * 8192, sI0 + 1, sMOB + 1)
            a('s_add_u32 s%d, s%d, %d\ns_add_u32 s%d, s%d, s%d\ns_addc_u32 s%d, s%d, 0', sT0, sT1, slot * 32768, sI1, sMXB, sT0, sI1 + 1, sMXB + 1)
            a('global_store_dword v%d, v%d, s[%d:%d] sc1\nglobal_store_dword v%d, v%d, s[%d:%d] sc1', vPub, d, sI0, sI0 + 1, vPub, d, sI1, sI1 + 1)
        a('s_mov_b64 exec, -1')
        a(L + ':')
    set_srd(a, pQ, sHoff, 640 * 8192)
    for b in range(10):
        blockoff(b); ld.batch(vOffB, fin_reg(wq(b, 0), wq(b, 1)))
        if b == 2: addresses()
        if b == 3: arrive2(a, vA, vArr)
    mark(a, opt, 9, vA, vB)
    set_srd(a, pK, sHoff, 640 * 8192)
    for b in range(10):
        blockoff(b); ld.batch(vOffB, fin_reg(wk(b, 0), wk(b, 1)))
        if b == 0:
            verify(a, opt, vArr, vVer, L_MISC)
            ld.retire(); ld.retire(); rings()
            mark(a, opt, 10, vA, vB)
    set_srd(a, pV, sHoff, 640 * 8192)
    for b in range(5):
        blockoff(b); ld.batch(vOffB, fin_v(b))
        if b == 0:
            L = a.label('L_cb')
            a('s_barrier\ns_cmp_lg_u32 s%d, 3\ns_cbranch_scc1 %s', S_W, L)
            a('s_mov_b64 exec, 1\nv_mov_b32 v%d, %d\nv_mov_b32 v%d, 1\nglobal_atomic_add v%d, v%d, s[8:9]\ns_mov_b64 exec, -1', vA, D_CHAIN * 4, vB, vA, vB)
            a(L + ':')
    mark(a, opt, 12, vA, vB)
    for p in range(8):
        for e in range(2): a('s_mov_b32 s%d, %d', sROW + 2 * p + e, rowconst(p, e) * 1280)
    a('s_mul_i32 s%d, s%d, 163840\ns_mul_i32 s%d, s%d, 640\ns_add_u32 s%d, s%d, s%d', sT1, sH, sT0, sME, sT1, sT1, sT0)
    set_srd(a, pO, sT1, 4096 * 1280)
    a('v_mul_u32_u24 v%d, 1280, v%d', vRowG, vRowG)
    a('s_lshl_b32 s%d, s%d, 7\nv_and_b32 v%d, 12, v%d\nv_add_u32 v%d, v%d, v%d\nv_lshl_add_u32 v%d, v%d, 2, v%d\nv_add_u32 v%d, s%d, v%d', sT0, S_W, vA, vN, vA, vA, vN, vOffW, vA, vRowG, vOffW, sT0, vOffW)
    a('s_lshl_b32 s%d, s%d, 5\ns_add_u32 s%d, s%d, 512', sT0, S_W, sT0, sT0)
    a('v_lshrrev_b32 v%d, 1, v%d\nv_lshl_add_u32 v%d, v%d, 2, v%d\nv_add_u32 v%d, s%d, v%d', vOffO, vN, vOffO, vOffO, vRowG, vOffO, sT0, vOffO)
    a('v_and_b32 v%d, 1, v%d\nv_mul_u32_u24 v%d, 0x0202, v%d\nv_lshl_or_b32 v%d, v%d, 16, v%d\nv_add_u32 v%d, 0x05040100, v%d', vSel5, vN, vSel5, vSel5, vSel5, vSel5, vSel5, vSel5, vSel5)
    for P in range(2):
        for kb in range(2):
            ld.batch(vOffW, fin_reg(wo(2 * P, kb), wo(2 * P + 1, kb)))
            a('v_add_u32 v%d, %d, v%d', vOffW, (64 * 1280) if kb == 0 else (16 - 64 * 1280), vOffW)
    def fin5(kb):
        def f(z):
            for p in range(8): put(a, wo(4, kb) + p, z + 2 * p, z + 2 * p + 1, 'v%d' % vSel5)
        return f
    for kb in range(2):
        ld.batch(vOffO, fin5(kb))
        a('v_add_u32 v%d, %d, v%d', vOffO, 64 * 1280, vOffO)
    L = a.label('L_cb'); L2 = a.label('L_cb')
    a('s_cmp_lg_u32 s%d, 3\ns_cbranch_scc1 %s', S_W, L)
    a('s_mov_b64 exec, 1\nv_mov_b32 v%d, %d\ns_mov_b32 s%d, %d', vA, D_CHAIN * 4, sCNT, SPIN)
    a(L2 + ':\nglobal_load_dword v%d, v%d, s[8:9] sc1', vB, vA)
    spin_guard(a, sCNT, 3)
    a('s_waitcnt vmcnt(0)\nv_cmp_gt_u32 vcc, 64, v%d\ns_cbranch_vccnz %s', vB, L2)
    if not opt.get('nokv'):
        L3 = a.label('L_cb')
        a('s_mov_b64 exec, 3\nv_lshlrev_b32 v%d, 8, v%d\ns_mov_b32 s%d, %d', vA, vL16, sCNT, SPIN)
        a(L3 + ':\nglobal_load_dword v%d, v%d, s[%d:%d] sc1', vB, vA, sKVF, sKVF + 1)
        spin_guard(a, sCNT, 4)
        a('s_waitcnt vmcnt(0)\nv_cmp_gt_u32 vcc, 2, v%d\ns_cbranch_vccnz %s', vB, L3)
    a('s_mov_b64 exec, -1')
    a(L + ':')
    ld.drain(); a.wl0()
    mark(a, opt, 3, vA, vB)
    a('s_barrier'); a.lq = []; a.vq = []
    a('s_mov_b32 s%d, 0\ns_lshl_b32 s%d, s%d, 10\ns_mov_b32 s%d, %d\ns_mov_b32 s%d, 0xffff0000', sSTEP, sW10, S_W, sKVO, L_KV, sHIM)
    for f in seg_ptr(a, sNEXT, 0) + kv_dma(a, sKVO, 0) + kv_dma(a, sKVO, 1): f()
    mark(a, opt, 4, vA, vB)
    if opt.get('tm'): a('s_memrealtime s[92:93]\ns_memtime s[96:97]')

def stamp_reg(i): return (72, 74, 76, 78, 80, 82, 84, 64)[i]
def stamp(a, opt, i):
    if i < 8: a('; PH %d', i)
    st = opt.get('stamp')
    if st == 1: st = list(range(8))
    if st and i in st:
        a('s_memtime s[%d:%d]', stamp_reg(st.index(i)), stamp_reg(st.index(i)) + 1)

def xdelay(a, cyc):
    while cyc > 0:
        n = min(cyc // 4, 16)
        if n <= 0: break
        a('s_nop %d', n - 1); cyc -= 4 * n

class Weave:
    def __init__(self): self.q = []
    def add(self, fs): self.q += fs if isinstance(fs, list) else [fs]
    def go(self, n):
        for i in range(n):
            if self.q: self.q.pop(0)()
    def flush(self): self.go(len(self.q))

def loop(a, fast, me, kind, opt):
    own = '' if fast else ' sc1'
    sfx = '_%s%d%s' % ('f' if fast else 's', me, kind)
    red, flg = kind == 'r', kind == 'g'
    kvf = flg and not opt.get('nokv')
    dblA, dblB = opt.get('dblA', 1), opt.get('dblB', 1)
    W = Weave(); SB = Weave()
    BSEL = MB + 8
    def run(fs):
        for f in fs: f()
    def zero(lo, hi): return ops(a, '\n'.join('v_mov_b64 %s, 0' % vr(r, 2) for r in range(lo, hi, 2)))
    def ring_ptrs(dMO, dMXW, dMXR, delta):
        f = ops(a, 's_add_u32 s%d, s%d, %d\ns_and_b32 s%d, s%d, 3\ns_lshl_b32 s%d, s%d, 13\ns_add_u32 s%d, s%d, s%d\ns_addc_u32 s%d, s%d, 0', sT0, sSTEP, delta, sT0, sT0, sT1, sT0, dMO, sMOB, sT1, dMO + 1, sMOB + 1)
        f += ops(a, 's_lshl_b32 s%d, s%d, 15', sT0, sT0)
        if dMXW is not None: f += ops(a, 's_add_u32 s%d, s%d, %d\ns_add_u32 s%d, s%d, s%d\ns_addc_u32 s%d, s%d, 0', sT1, sT0, me * 16384, dMXW, sMXB, sT1, dMXW + 1, sMXB + 1)
        if dMXR is not None: f += ops(a, 's_add_u32 s%d, s%d, %d\ns_add_u32 s%d, s%d, s%d\ns_addc_u32 s%d, s%d, 0', sT1, sT0, (1 - me) * 16384, dMXR, sMXB, sT1, dMXR + 1, sMXB + 1)
        return f
    def xch_ptrs():
        f = ops(a, 's_mov_b64 s[%d:%d], s[%d:%d]\ns_mov_b64 s[%d:%d], s[%d:%d]', sXZ, sXZ + 1, sXR, sXR + 1, sCURP, sCURP + 1, sCUR, sCUR + 1)
        f += ops(a, 's_and_b32 s%d, s%d, 3\ns_lshl_b32 s%d, s%d, 19', sT0, sSTEP, sT0, sT0)
        f += ops(a, 's_add_u32 s%d, s%d, %d\ns_add_u32 s%d, s%d, s%d\ns_addc_u32 s%d, s%d, 0', sT1, sT0, me << 18, sXW, sXB, sT1, sXW + 1, sXB + 1)
        f += ops(a, 's_add_u32 s%d, s%d, %d\ns_add_u32 s%d, s%d, s%d\ns_addc_u32 s%d, s%d, 0', sT1, sT0, (1 - me) << 18, sXR, sXB, sT1, sXR + 1, sXB + 1)
        return f
    def m_loads(d4, d1, p): a('global_load_dwordx4 %s, v%d, s[%d:%d] sc1\nglobal_load_dword v%d, v%d, s[%d:%d] sc1', vr(d4, 4), vT16, p, p + 1, d1, vT4, p, p + 1)
    def rd_m(b):
        p = b % 5; base = L_M0 if b < 5 else L_M1; dst = (MA if b < 5 else MB) + 4 * p
        if p == 4: return [lambda: a.ds(('m', b), 'ds_read_b128 %s, v%d offset:%d', vr(dst, 4), vL16, base + 4096)]
        return [lambda: (a('v_xor_b32 v0, %d, v%d', p << 10, vT16), a.ds(('m', b), 'ds_read_b128 %s, v0 offset:%d', vr(dst, 4), base))]
    def mreg(b): return (MA if b < 5 else MB) + 4 * (b % 5)
    def mm(d, A, B, pre=None, n=1):
        if pre: a.wl(pre)
        smf(a, d, A, B)
        SB.go(2 if n < 2 else 1); W.go(n)
    WSL = [X, X + 8, MB + 4, MB + 12]
    def wslot(op): return WSL[op] if op < 4 else WSL[op & 1]
    def rd_wv(op):
        f = []
        for half in range(2):
            bs, off = wv_addr(op, half)
            f.append(lambda bs=bs, off=off, half=half: a.ds(('wv', op), 'ds_read_b128 %s, v%d offset:%d', vr(wslot(op) + 4 * half, 4), bs, off))
        return f
    def idle_work(first=False):
        if first or not (red and dblA): run(zero(ACCQ, ACCQ + 24))
        run(rd_wv(0) + rd_wv(1) + rd_wv(2) + rd_wv(3))
        if dblB:
            xdelay(a, opt.get('gB', 0)); m_loads(MB, PO1, sMO)
        run(xch_ptrs() + seg_ptr(a, sNEXT, 1))
    run(ring_ptrs(sMO, None, sMXR, 0))
    a('s_add_u32 s%d, s%d, %d\ns_addc_u32 s%d, s%d, 0', sXR, sXB, (3 << 19) + ((1 - me) << 18), sXR + 1, sXB + 1)
    a('s_add_u32 s%d, s%d, %d\ns_addc_u32 s%d, s%d, 0', sCUR, sSEGM, 64 << 19, sCUR + 1, sSEGM + 1)
    m_loads(MA, PW1, sMO)
    idle_work(True)
    a('L_step%s:' % sfx)
    stamp(a, opt, 12)
    a('s_waitcnt vmcnt(%d)', 2 if dblB else 0)
    a('L_own2%s:' % sfx)
    stamp(a, opt, 0)
    smf(a, ACCQ, MA, wq(0, 0))
    a.ds('mw', 'ds_write_b128 v%d, %s offset:%d', vT16, vr(MA, 4), L_M0)
    a('v_max3_u32 v0, v%d, v%d, v%d', MA, MA + 1, MA + 2)
    smf(a, ACCQ + 4, MA, wq(0, 1))
    a.ds('mw', 'ds_write_b32 v%d, v%d offset:%d', vT4, PW1, L_M0)
    a('v_max3_u32 v0, v0, v%d, v%d', MA + 3, PW1)
    smf(a, ACCK, MA, wk(0, 0))
    a('v_cmp_eq_u32 vcc, -1, v0')
    smf(a, ACCK + 4, MA, wk(0, 1))
    a('s_cbranch_vccnz L_own%s' % sfx)
    m_loads(MB, PO1, sMXR)
    a.wl('mw'); a('s_barrier')
    stamp(a, opt, 1)
    run(rd_m(1)); smf(a, ACCV, MA, wslot(0)); run(rd_m(2)); smf(a, ACCV + 4, MA, wslot(1)); run(rd_m(3)); run(rd_m(4))
    SB.add(ops(a, 's_lshr_b32 s%d, s%d, 2\ns_xor_b32 s%d, s%d, s%d\ns_and_b32 s%d, s%d, 1\ns_lshl_b32 s%d, s%d, 13\ns_lshl_b32 s%d, s%d, 19\ns_add_u32 s%d, s%d, s%d', sT0, sSTEP, sT0, sT0, S_PAR, sT0, sT0, sT0, sT0, sT1, sSTEP, sT0, sT0, sT1))
    SB.add(ops(a, 's_add_u32 s%d, s%d, s%d\ns_addc_u32 s%d, s%d, 0', sCUR, sSEGM, sT0, sCUR + 1, sSEGM + 1))
    if red: SB.add(ring_ptrs(sMOZ, sMXZ, None, 3))
    SB.add(ops(a, 's_and_b32 s%d, s%d, 1\ns_mul_i32 s%d, s%d, 163840\ns_add_u32 s%d, s%d, s%d\ns_addc_u32 s%d, s%d, 0', sT0, sSTEP, sT0, sT0, sPART, sPB, sT0, sPART + 1, sPB + 1))
    SB.add(ops(a, 's_bfe_u32 s%d, s%d, 0x10001', sTAG, sSTEP))
    if kvf: SB.add(ops(a, 's_add_u32 s%d, s%d, 3\ns_min_u32 s%d, s%d, %d', sNEED, sSTEP, sNEED, sNEED, NSEG))
    def fold(acc, pk=False):
        if pk: return ops(a, 'v_pk_add_f32 %s, %s, %s\nv_pk_add_f32 %s, %s, %s', vr(acc, 2), vr(acc, 2), vr(acc + 2, 2), vr(acc + 4, 2), vr(acc + 4, 2), vr(acc + 6, 2))
        return ops(a, '\n'.join('v_add_f32 v%d, v%d, v%d' % (acc + i, acc + i, acc + i + 2) for i in (0, 4, 1, 5)))
    def pack(acc, dst, bydim):
        if bydim: return ops(a, 'v_cvt_pk_bf16_f32 v%d, v%d, v%d\nv_cvt_pk_bf16_f32 v%d, v%d, v%d', dst, acc, acc + 4, dst + 1, acc + 1, acc + 5)
        return ops(a, 'v_cvt_pk_bf16_f32 v%d, v%d, v%d\nv_cvt_pk_bf16_f32 v%d, v%d, v%d', dst, acc, acc + 1, dst + 1, acc + 4, acc + 5)
    def send_v():
        d = ACCV + 2
        return fold(ACCV) + pack(ACCV, d, False) + ops(a, 'v_min_u32 v%d, -2, v%d\nv_min_u32 v%d, -2, v%d', d, d, d + 1, d + 1) + \
            ops(a, 'global_store_dwordx2 v%d, %s, s[%d:%d] sc1', vT8, vr(d, 2), sXW, sXW + 1)
    def recv_v(): return ops(a, 'global_load_dwordx2 %s, v%d, s[%d:%d] sc1', vr(VO, 2), vT8, sXR, sXR + 1)
    def oth_check():
        stamp(a, opt, 11)
        a('s_waitcnt vmcnt(0)')
        a('L_oth2%s:' % sfx)
        stamp(a, opt, 2)
        a('v_max3_u32 v0, v%d, v%d, v%d\nv_max3_u32 v0, v0, v%d, v%d\nv_cmp_eq_u32 vcc, -1, v0', MB, MB + 1, MB + 2, MB + 3, PO1)
        a.ds('mw', 'ds_write_b128 v%d, %s offset:%d', vT16, vr(MB, 4), L_M1)
        a.ds('mw', 'ds_write_b32 v%d, v%d offset:%d', vT4, PO1, L_M1)
        a('s_cbranch_vccnz L_oth%s' % sfx)
    chk = opt.get('chk', 3)
    W.add(rd_wv(4) + rd_wv(5))
    for b in range(1, 5):
        A = mreg(b)
        mm(ACCQ, A, wq(b, 0), ('m', b)); mm(ACCQ + 4, A, wq(b, 1)); mm(ACCK, A, wk(b, 0)); mm(ACCK + 4, A, wk(b, 1))
        W.flush()
        if 2 <= b < 4: W.add(rd_wv(2 * b + 2))
        mm(ACCV, A, wslot(2 * b), ('wv', 2 * b))
        if 2 <= b < 4: W.add(rd_wv(2 * b + 3))
        mm(ACCV + 4, A, wslot(2 * b + 1), ('wv', 2 * b + 1))
        if b == chk: oth_check()
    W.flush(); SB.flush()
    KX0, KX1, QB, VXa, VXb = MA, X, MB, MA + 16, MB + 16
    def rd_kx(t, kk): return lambda: a.ds(('kx', t, kk), 'ds_read_b128 %s, v%d offset:%d', vr((KX1 if t else KX0) + 4 * kk, 4), vKV, t * 4096 + kk * 1024)
    smf(a, ACCQ, MB, wq(5, 0))
    a('v_add_u32 v%d, s%d, v%d', vKV, sKVO, vL16)
    smf(a, ACCQ + 4, MB, wq(5, 1))
    a.wl('mw'); a('s_barrier')
    run(rd_m(6)); smf(a, ACCK, MB, wk(5, 0)); run(rd_m(7)); smf(a, ACCK + 4, MB, wk(5, 1)); run(rd_m(8)); run(rd_m(9))
    a('v_add_u32 v%d, s%d, v%d\ns_xor_b32 s%d, s%d, %d', vVV, sKVO, vT16, sKVO, sKVO, L_KV ^ (L_KV + 16384))
    W.add(send_v())
    SB.add([rd_kx(0, kk) for kk in range(4)] + [rd_kx(1, kk) for kk in range(4)])
    nv = 0
    def mm1(d, A, B, pre=None):
        if pre: a.wl(pre)
        smf(a, d, A, B); SB.go(1); W.go(1)
    for b in range(6, 10):
        A = mreg(b)
        mm1(ACCQ, A, wq(b, 0), ('m', b)); mm1(ACCQ + 4, A, wq(b, 1)); mm1(ACCK, A, wk(b, 0)); mm1(ACCK + 4, A, wk(b, 1))
        if b == 7: SB.add(kv_dma(a, sKVO, 0))
    W.flush(); SB.flush()
    stamp(a, opt, 3)
    QP, KP, VP = ACCQ + 2, (CAR if me == 0 else ACCK + 6), (CAR if me == 1 else ACCV + 2)
    def pub_prev(p):
        if me == 0: return ops(a, 'global_store_dword v%d, v%d, s[%d:%d] sc1\nglobal_store_dword v%d, v%d, s[%d:%d] offset:288 sc1', vTw, CAR, p, p + 1, vTw, CAR + 1, p, p + 1)
        return ops(a, 'global_store_dwordx2 v%d, %s, s[%d:%d] sc1', vT8, vr(CAR, 2), p, p + 1)
    run(pub_prev(sCURP))
    run(fold(ACCQ, True))
    a('v_pk_mul_f32 %s, %s, s[%d:%d]\nv_pk_mul_f32 %s, %s, s[%d:%d]', vr(ACCQ, 2), vr(ACCQ, 2), sSCALE, sSCALE + 1, vr(ACCQ + 4, 2), vr(ACCQ + 4, 2), sSCALE, sSCALE + 1)
    run(pack(ACCQ, QP, True))
    a.ds('tw', 'ds_write2_b32 v%d, v%d, v%d offset0:0 offset1:72', vTw, QP, QP + 1)
    run(fold(ACCK, True) + pack(ACCK, KP, True))
    a.ds('tw', 'ds_write2_b32 v%d, v%d, v%d offset0:0 offset1:72', vTwk, KP, KP + 1)
    run(recv_v())
    nbk = 0
    BK = Weave()
    if kvf:
        BK.add(lambda: a('s_mov_b64 exec, 3\nv_lshlrev_b32 v0, 8, v%d\nglobal_load_dword v%d, v0, s[%d:%d] sc1\ns_mov_b64 exec, -1', vL16, PO1, sKVF, sKVF + 1)); nbk += 1
    BK.add(kv_dma(a, sKVO, 1)); nbk += 2
    BK.add(ops(a, 'global_store_dwordx2 v%d, %s, s[%d:%d] sc1', vT8, vr(NEG, 2), sXZ, sXZ + 1)); nbk += 1
    if flg:
        BK.add(lambda: a('s_max_i32 s%d, s%d, 1\ns_sub_u32 s%d, s%d, 1\ns_mov_b64 exec, 1\nv_mov_b32 v%d, s%d\nglobal_store_dword v%d, v%d, s[%d:%d] sc1\ns_mov_b64 exec, -1', sT0, sSTEP, sT0, sT0, PW1, sT0, vL16, PW1, sFLG, sFLG + 1)); nbk += 1
    if red:
        BK.add(lambda: a('s_mov_b64 exec, s[%d:%d]\nglobal_store_dword v%d, v%d, s[%d:%d]%s\nglobal_store_dword v%d, v%d, s[%d:%d] sc1\ns_mov_b64 exec, -1', sPM, sPM + 1, vPub, NEG, sMOZ, sMOZ + 1, own, vPub, NEG, sMXZ, sMXZ + 1)); nbk += 2
    BK.go(opt.get('bk1', 6))
    a.wl('tw'); a('s_barrier')
    stamp(a, opt, 4)
    def rd_t(tag, dst, base, kk): a.ds(tag, 'ds_read_b128 %s, v%d offset:%d', vr(dst, 4), vTr, base + kk * 64)
    for kk in range(4): rd_t(('q', kk), QB + 4 * kk, L_TQ, kk)
    BK.flush()
    S = [ACCQ, ACCQ + 4, ACCK]
    KA = KX0; PX = ACCK + 4; E = X
    for kk in range(4):
        a.wl(('q', kk)); mf32(a, S[0], KX0 + 4 * kk, QB + 4 * kk, S[0] if kk else None); rd_t(('k', kk), KA + 4 * kk, L_TK, kk)
    stamp(a, opt, 20)
    def expcvt(src, dst):
        return ops(a, 'v_exp_f32 v%d, v%d\nv_exp_f32 v%d, v%d\nv_exp_f32 v%d, v%d\nv_cvt_pk_bf16_f32 v%d, v%d, v%d', E, src, E + 1, src + 1, E + 2, src + 2, dst, E, E + 1) + \
               ops(a, 'v_exp_f32 v%d, v%d\nv_cvt_pk_bf16_f32 v%d, v%d, v%d', E + 3, src + 3, dst + 1, E + 2, E + 3)
    mf32(a, S[1], KX1, QB)
    a.ds(('vx', 0), 'ds_read_b128 %s, v%d offset:8192', vr(VXa, 4), vVV)
    mf32(a, S[1], KX1 + 4, QB + 4, S[1])
    a.ds(('vx', 1), 'ds_read_b128 %s, v%d offset:12288', vr(VXb, 4), vVV)
    W.add(expcvt(S[0], PX))
    mf32(a, S[1], KX1 + 8, QB + 8, S[1]); mf32(a, S[1], KX1 + 12, QB + 12, S[1]); W.go(1)
    stamp(a, opt, 21)
    for kk in range(4):
        a.wl(('k', kk)); mf32(a, S[2], KA + 4 * kk, QB + 4 * kk, S[2] if kk else None); W.go(2 if kk != 1 else 1)
        if kk == 2: W.add(expcvt(S[1], PX + 2))
    W.flush()
    stamp(a, opt, 22)
    a('s_waitcnt vmcnt(%d)', nbk)
    a('L_v2%s:' % sfx)
    LA, OA, OB, OP = QB, QB + 4, QB + 8, QB + 12
    a('v_max_u32 v0, v%d, v%d\nv_cmp_eq_u32 vcc, -1, v0', VO, VO + 1)
    a.wl(('vx', 1))
    mf32(a, LA, ONE, PX)
    a('v_exp_f32 v%d, v%d', E, S[2])
    a('s_cbranch_vccnz L_v%s' % sfx)
    VP2 = ACCV + 6
    mf32(a, OA, VXa, PX)
    a('v_exp_f32 v%d, v%d', E + 1, S[2] + 1)
    mf32(a, OB, VXb, PX)
    a('v_lshlrev_b32 v%d, 16, v%d\nv_cvt_pk_bf16_f32 v%d, v%d, v%d', ACCV + 2, VO, PM, E, E + 1)
    a('v_and_b32 v%d, s%d, v%d\nv_lshlrev_b32 v%d, 16, v%d', ACCV + 3, sHIM, VO, ACCV + 6, VO + 1)
    mf16(a, LA, ONE, PM, LA)
    a('v_and_b32 v%d, s%d, v%d', ACCV + 7, sHIM, VO + 1)
    run(fold(ACCV) + pack(ACCV, VP, False) + ops(a, 'v_mov_b32 v%d, v%d', VP2, VP + 1))
    a('s_cmp_eq_u32 s%d, %d', sSTEP, NSEG - 1)
    mf16(a, OA, VP, PM, OA); mf16(a, OB, VP2, PM, OB)
    a('s_cbranch_scc1 L_last%s' % sfx)
    stamp(a, opt, 25)
    def expm():
        a('v_exp_f32 v%d, v%d\nv_exp_f32 v%d, v%d\nv_cvt_pk_bf16_f32 v%d, v%d, v%d', E, S[2], E + 1, S[2] + 1, PM, E, E + 1)
    def pv_m():
        mf16(a, LA, ONE, PM, LA); mf16(a, OA, VP, PM, OA); mf16(a, OB, VP2, PM, OB)
    def norm(check):
        a('v_rcp_f32 v%d, v%d', E, LA)
        if check: a('v_subrev_u32 v0, s%d, v%d\nv_cmp_lt_u32 vcc, s%d, v0', sLO, LA, sHI)
        for r in (OA, OB, OA + 2, OB + 2): a('v_pk_mul_f32 %s, %s, %s op_sel_hi:[1,0]', vr(r, 2), vr(r, 2), vr(E, 2))
        for i in range(4): a('v_cvt_pk_bf16_f32 v%d, v%d, v%d', OP + i, OA + i, OB + i)
    stamp(a, opt, 26)
    norm(True)
    a('s_cbranch_vccnz L_fb%s' % sfx)
    a('L_norm%s:' % sfx)
    a('s_mov_b64 exec, s[%d:%d]', sOM, sOM + 1)
    a.ds('ow', 'ds_write_b128 v%d, %s offset:%d', vOw, vr(OP, 4), L_O)
    a('s_mov_b64 exec, -1')
    OUT = ACCQ
    run(zero(OUT, OUT + 20))
    a.wl('ow'); a('s_barrier')
    stamp(a, opt, 5)
    OPD = MA
    for kb in range(2): a.ds(('o', kb), 'ds_read_b128 %s, v%d offset:%d', vr(OPD + 4 * kb, 4), vL16, L_O + 1024 * kb)
    if red: a.ds('bs', 'ds_read_b128 %s, v%d offset:%d', vr(BSEL, 4), vT16B, L_BSEL - 65536)
    a('s_add_u32 s%d, s%d, 1', sSTEP, sSTEP)
    run(ring_ptrs(sMO, sMXW if red else None, sMXR, 0))
    ST = X
    def post_pair(P):
        x = OUT + 8 * P
        return fold(x, P == 1) + ops(a, 'v_cvt_pk_bf16_f32 v%d, v%d, v%d\nv_cvt_pk_bf16_f32 v%d, v%d, v%d', ST + 2 * P, x, x + 4, ST + 2 * P + 1, x + 1, x + 5) + \
            ops(a, 'v_and_or_b32 v%d, v%d, -2, s%d\nv_and_or_b32 v%d, v%d, -2, s%d', ST + 2 * P, ST + 2 * P, sTAG, ST + 2 * P + 1, ST + 2 * P + 1, sTAG)
    x5 = OUT + 16
    for n, t in enumerate((4, 0, 1, 2, 3)):
        a.wl(('o', 0)); smf(a, OUT + 4 * t, OPD, wo(t, 0)); W.go(1)
        a.wl(('o', 1)); smf(a, OUT + 4 * t, OPD + 4, wo(t, 1))
        if n == 3:
            W.add(ops(a, 'v_add_f32 v%d, v%d, v%d\nv_add_f32 v%d, v%d, v%d\nv_cvt_pk_bf16_f32 v%d, v%d, v%d\nv_and_or_b32 v%d, v%d, -2, s%d', x5, x5, x5 + 2, x5 + 1, x5 + 1, x5 + 3, x5 + 2, x5, x5 + 1, x5 + 2, x5 + 2, sTAG))
            W.add(ops(a, 'global_store_dword v%d, v%d, s[%d:%d]%s', vPB, x5 + 2, sPART, sPART + 1, own))
        W.go(2)
    W.flush()
    run(post_pair(0) + post_pair(1))
    a('global_store_dwordx4 v%d, %s, s[%d:%d]%s', vPA, vr(ST, 4), sPART, sPART + 1, own)
    stamp(a, opt, 6)
    D, D2, RD = MA + 4, MB, MA + 12
    if kvf:
        a('s_mov_b64 exec, 3\ns_waitcnt vmcnt(%d)\nL_kv2%s:\nv_cmp_gt_u32 vcc, s%d, v%d\ns_cbranch_vccnz L_kv%s\ns_mov_b64 exec, -1', nbk + 1, sfx, sNEED, PO1, sfx)
    if red:
        a.wl('bs')
        if opt.get('ackA', 1) >= 0: a('s_waitcnt vmcnt(%d)', opt.get('ackA', 1))
        xdelay(a, opt.get('dA', 0))
        stamp(a, opt, 8)
        def ldA(d): a('global_load_dwordx4 %s, v%d, s[%d:%d] sc1\nglobal_load_dwordx4 %s, v%d, s[%d:%d] offset:1024 sc1', vr(d, 4), vRd, sPART, sPART + 1, vr(d + 4, 4), vRd, sPART, sPART + 1)
        def redA(d, n):
            a('s_waitcnt vmcnt(%d)', n + 1)
            mf32(a, RD, d, BSEL)
            a('v_bitop3_b32 v0, v%d, v%d, s%d bitop3:0x7e\nv_bitop3_b32 v%d, v%d, v%d, s%d bitop3:0x7e', d, d + 1, sTAG, PW1, d + 2, d + 3, sTAG)
            a('s_waitcnt vmcnt(%d)', n)
            mf32(a, RD, d + 4, BSEL, RD)
            a('v_bitop3_b32 v%d, v%d, v%d, s%d bitop3:0x7e\nv_bitop3_b32 v%d, v%d, v%d, s%d bitop3:0x7e', VO, d + 4, d + 5, sTAG, VO + 1, d + 6, d + 7, sTAG)
            a('v_or3_b32 v0, v0, v%d, v%d\nv_bitop3_b32 v0, v0, v%d, 1 bitop3:0xa8\nv_cmp_ne_u32 vcc, 0, v0', PW1, VO, VO + 1)
            a('v_pk_add_f32 %s, %s, %s\nv_add_f32 v%d, v%d, v%d', vr(RD, 2), vr(RD, 2), vr(RD + 2, 2), RD, RD, RD + 1)
        ldA(D)
        if dblA:
            run(zero(ACCQ, ACCQ + 24))
            xdelay(a, opt.get('gA', 0))
            ldA(D2)
        a('L_pa2%s:' % sfx)
        redA(D, 2 if dblA else 0)
        a('s_cbranch_vccnz L_pa%s' % sfx)
        a('L_pa3%s:' % sfx)
        stamp(a, opt, 7)
        a('v_mov_b32_dpp v%d, v%d quad_perm:[1,1,3,3] row_mask:0xf bank_mask:0xf', RD + 1, RD)
        a('v_cvt_pk_bf16_f32 v%d, v%d, v%d\nv_min_u32 v%d, -2, v%d', RD, RD, RD + 1, RD, RD)
        a('s_mov_b64 exec, s[%d:%d]', sPM, sPM + 1)
        stamp(a, opt, 10)
        a('global_store_dword v%d, v%d, s[%d:%d]%s\nglobal_store_dword v%d, v%d, s[%d:%d] sc1\ns_mov_b64 exec, -1', vPub, RD, sMO, sMO + 1, own, vPub, RD, sMXW, sMXW + 1)
        if opt.get('ackB', 1) == 1: a('s_waitcnt vmcnt(1)')
    a('s_barrier')
    stamp(a, opt, 9)
    xdelay(a, opt.get('dB', 0))
    m_loads(MA, PW1, sMO)
    if opt.get('stamp'):
        a('s_waitcnt lgkmcnt(0)')
        a('s_lshl_b32 s%d, s%d, 5\ns_lshl_b32 s%d, s%d, 9\ns_and_b32 s%d, s%d, 0x1e0\ns_add_u32 s%d, s%d, s%d\ns_add_u32 s%d, s%d, %d', sT0, sSTEP, sT1, S_W, sT0, sT0, sT0, sT0, sT1, sT0, sT0, L_MISC)
        a('v_mov_b32 v0, s%d', sT0)
        for i in range(8): a('v_mov_b32 v%d, s%d', MA + 4 + i, stamp_reg(i))
        a('ds_write_b128 v0, %s\nds_write_b128 v0, %s offset:16\ns_waitcnt lgkmcnt(0)', vr(MA + 4, 4), vr(MA + 8, 4))
    a.lq = []; idle_work()
    a('s_branch L_step%s' % sfx)
    a.lq = []
    def retry(name, code, body, back):
        a('L_%s%s:' % (name, sfx))
        a('s_add_u32 s%d, s%d, 1\ns_cmp_gt_u32 s%d, %d\ns_cbranch_scc1 L_bail%d', sCNT, sCNT, sCNT, SPIN, code)
        body()
        a('s_branch L_%s%s' % (back, sfx))
    def own_retry():
        a('s_waitcnt lgkmcnt(0)')
        if dblB:
            a('s_waitcnt vmcnt(0)')
            for i in range(0, 4, 2): a('v_mov_b64 %s, %s', vr(MA + i, 2), vr(MB + i, 2))
            a('v_mov_b32 v%d, v%d', PW1, PO1)
            m_loads(MB, PO1, sMO)
        else:
            m_loads(MA, PW1, sMO); a('s_waitcnt vmcnt(0)')
        run(zero(ACCQ, ACCQ + 16))
    retry('own', 5, own_retry, 'own2')
    retry('oth', 6, lambda: (a('s_waitcnt lgkmcnt(0)'), m_loads(MB, PO1, sMXR), a('s_waitcnt vmcnt(0)')), 'oth2')
    retry('v', 6, lambda: (run(recv_v()), a('s_waitcnt vmcnt(0)')), 'v2')
    if red:
        if dblA:
            def body():
                ldA(D); redA(D2, 2); a('s_cbranch_vccz L_pa3%s' % sfx); ldA(D2)
            retry('pa', 8, body, 'pa2')
        else: retry('pa', 8, lambda: ldA(D), 'pa2')
    if kvf: retry('kv', 7, lambda: a('v_lshlrev_b32 v0, 8, v%d\nglobal_load_dword v%d, v0, s[%d:%d] sc1\ns_waitcnt vmcnt(0)', vL16, PO1, sKVF, sKVF + 1), 'kv2')
    a('L_fb%s:' % sfx)
    a('v_max3_f32 v0, v%d, v%d, v%d', S[0], S[0] + 1, S[0] + 2)
    for r in range(S[0] + 3, S[0] + 11, 2): a('v_max3_f32 v0, v0, v%d, v%d', r, r + 1)
    a('v_max_f32 v0, v0, v%d', S[0] + 11)
    a('v_mov_b32 v%d, v0\nv_permlane16_swap_b32 v0, v%d\nv_max_f32 v0, v0, v%d', E, E, E)
    a('v_mov_b32 v%d, v0\nv_permlane32_swap_b32 v0, v%d\nv_max_f32 v0, v0, v%d', E, E, E)
    for r in range(S[0], S[0] + 12): a('v_sub_f32 v%d, v%d, v0', r, r)
    run(expcvt(S[0], PX) + expcvt(S[1], PX + 2)); expm()
    mf32(a, LA, ONE, PX); mf32(a, OA, VXa, PX); mf32(a, OB, VXb, PX); pv_m()
    norm(False)
    a('s_branch L_norm%s' % sfx)
    a('L_last%s:' % sfx)
    run(pub_prev(sCUR))
    a('s_waitcnt vmcnt(0) lgkmcnt(0)\ns_barrier')
    if flg:
        a('s_mov_b64 exec, 1\nv_mov_b32 v0, 0\nv_mov_b32 v1, %d\nglobal_store_dword v0, v1, s[%d:%d] sc1\ns_waitcnt vmcnt(0)\ns_mov_b64 exec, -1', NSEG, sFLG, sFLG + 1)
    a('s_branch L_chain_end')
    a.lq = []; a.vq = []

def chain(a, opt):
    setup(a, opt)
    a('s_mov_b32 s%d, 0', sCNT)
    variants = [(f, me, k) for f in (1, 0) for me in (0, 1) for k in 'rig']
    a('s_cmp_eq_u32 s%d, 3\ns_cselect_b32 s%d, 2, 1\ns_cmp_lg_u32 s%d, 0\ns_cselect_b32 s%d, 0, s%d', S_W, sT0, sRED, sT0, sT0)
    a('s_mul_i32 s%d, s%d, 3\ns_add_u32 s%d, s%d, s%d\ns_cmp_eq_u32 s%d, 0\ns_cselect_b32 s%d, 6, 0\ns_add_u32 s%d, s%d, s%d', sT1, sME, sT0, sT0, sT1, S_FAST, sT1, sT0, sT0, sT1)
    for i in range(1, len(variants)): a('s_cmp_eq_u32 s%d, %d\ns_cbranch_scc1 L_var%d', sT0, i, i)
    for i, (f, me, k) in enumerate(variants):
        a('L_var%d:' % i)
        loop(a, f, me, k, opt)
    a('L_chain_end:')
    mark(a, opt, 5, 20, 21)
    if opt.get('stamp'):
        a('s_barrier\nv_add_u32 v0, %d, v%d\nds_read_b64 v[14:15], v0\ns_lshl_b32 s%d, s%d, 11\ns_add_u32 s%d, s%d, %d\nv_add_u32 v0, s%d, v%d\ns_waitcnt lgkmcnt(0)\nglobal_store_dwordx2 v0, v[14:15], s[6:7]\ns_waitcnt vmcnt(0)', L_MISC, vT8, sT0, S_ROLE, sT0, sT0, STAMP, sT0, vT8)
    if opt.get('tm'):
        a('s_memrealtime s[94:95]\ns_memtime s[98:99]\ns_waitcnt lgkmcnt(0)\ns_sub_u32 s98, s98, s96\ns_lshl_b32 s98, s98, 8\ns_min_u32 s16, s16, 255\ns_or_b32 s16, s16, s98\ns_lshl_b32 s%d, s%d, 4\ns_add_u32 s%d, s%d, %d\nv_mov_b32 v0, s%d', sT0, S_ROLE, sT0, sT0, STAMP + 0x40000, sT0)
        a('v_mov_b32 v14, s90\nv_mov_b32 v15, s92\nv_mov_b32 v16, s94\nv_mov_b32 v17, s%d\nglobal_store_dwordx4 v0, v[14:17], s[6:7]\ns_waitcnt vmcnt(0)', sCNT)
    a('s_branch L_end')
```

```python
from asmgen import *
from common import *

def spin_guard(a, cnt, code):
    a('s_sub_u32 s%d, s%d, 1', cnt, cnt)
    a('s_cbranch_scc1 L_bail%d', code)

def prologue(a, opt):
    a('s_cmp_ge_u32 s2, 256\ns_cbranch_scc1 L_end')
    a('s_load_dwordx4 s[8:11], s[0:1], %d', KA_DBG)
    a('v_lshrrev_b32 v1, 6, v0\nv_readfirstlane_b32 s%d, v1', S_W)
    a('s_getreg_b32 s%d, hwreg(HW_REG_XCC_ID, 0, 4)', S_XCC)
    a('s_min_u32 s12, s%d, 7\ns_lshl_b32 s12, s12, 5\ns_lshr_b32 s13, s2, 3\ns_add_u32 s%d, s12, s13\ns_mov_b32 s%d, 0', S_XCC, S_ROLE, S_VER)
    if opt.get('badguess'): a('s_xor_b32 s13, s2, 5\ns_and_b32 s13, s13, 31\ns_add_u32 s%d, s12, s13', S_ROLE)
    a('s_waitcnt lgkmcnt(0)')
    a('s_add_u32 s6, s10, 0x3fffff\ns_addc_u32 s7, s11, 0\ns_and_b32 s6, s6, 0xffc00000\ns_mov_b32 s%d, 1', S_FAST)
    if opt.get('mark'):
        a('s_cmp_lg_u32 s2, 0\ns_cbranch_scc1 L_nomark0')
        mark(a, opt, 0, 2, 3, True)
        a('L_nomark0:')
    a('L_dispatch:')

def arrive1(a, va, vb):
    L = a.label('L_ar')
    a('s_or_b32 s96, s%d, s%d\ns_cbranch_scc1 %s', S_W, S_VER, L)
    a('v_mbcnt_lo_u32_b32 v%d, -1, 0\nv_mbcnt_hi_u32_b32 v%d, -1, v%d\ns_lshl_b32 s96, s2, 8\nv_lshl_add_u32 v%d, v%d, 2, s96\nv_mov_b32 v%d, 0', va, va, va, va, va, vb)
    a('global_store_dword v%d, v%d, s[6:7] sc1', va, vb)
    a(L + ':')

def arrive2(a, va, vd):
    L = a.label('L_ar')
    a('s_or_b32 s96, s%d, s%d\ns_cbranch_scc1 %s', S_W, S_VER, L)
    a('s_and_b32 s96, s%d, 31\ns_lshl_b32 s96, 1, s96\ns_lshl_b32 s97, s%d, 3\ns_mov_b64 exec, 1', S_ROLE, S_XCC)
    a('v_mov_b32 v%d, s97\nv_mov_b32 v%d, s96\nv_mov_b32 v%d, 0x100', va, vd, vd + 1)
    a('global_atomic_add_x2 %s, v%d, %s, s[8:9] offset:%d sc0\ns_mov_b64 exec, -1', vr(vd, 2), va, vr(vd, 2), D_XCC * 4)
    a(L + ':')

def verify(a, opt, vd, t, lds):
    L = a.label('L_vf'); L1 = a.label('L_vf'); L2 = a.label('L_vf'); L3 = a.label('L_vf')
    a('s_cmp_lg_u32 s%d, 0\ns_cbranch_scc1 %s', S_VER, L)
    a('s_cmp_lg_u32 s%d, 0\ns_cbranch_scc1 %s', S_W, L1)
    a('s_mov_b64 exec, 0xffff\nv_mbcnt_lo_u32_b32 v%d, -1, 0\nv_lshlrev_b32 v%d, 3, v%d\ns_mov_b32 s96, %d', t + 2, t + 2, t + 2, SPIN)
    a(L2 + ':\nglobal_load_dwordx2 %s, v%d, s[8:9] offset:%d sc1', vr(t, 2), t + 2, D_XCC * 4)
    spin_guard(a, 96, 1)
    a('s_waitcnt vmcnt(0)\nv_lshrrev_b32 v%d, 8, v%d', t + 3, t + 1)
    for sh in (1, 2, 4, 8): a('v_add_u32_dpp v%d, v%d, v%d row_shr:%d row_mask:0xf bank_mask:0xf bound_ctrl:0', t + 3, t + 3, t + 3, sh)
    a('v_readlane_b32 s97, v%d, 15\ns_cmp_lt_u32 s97, 256\ns_cbranch_scc1 %s', t + 3, L2)
    a('v_cmp_eq_u32 vcc, -1, v%d\nv_cmp_eq_u32 s[98:99], 0x2000, v%d' % (t, t + 1) if False else 'v_cmp_eq_u32 vcc, -1, v%d\ns_mov_b32 s98, vcc_lo\nv_cmp_eq_u32 vcc, 0x2000, v%d\ns_and_b32 s98, s98, vcc_lo' % (t, t + 1))
    a('s_mov_b32 s97, -1\ns_cmp_eq_u32 s98, 0xff\ns_cbranch_scc1 %s', L3)
    a('v_readlane_b32 s97, v%d, s%d\nv_readlane_b32 s98, v%d, s%d\nv_readlane_b32 s99, v%d, 0', t + 3, S_XCC, t + 1, S_XCC, vd + 1)
    a('s_lshr_b32 s98, s98, 8\ns_lshr_b32 s99, s99, 8\ns_sub_u32 s97, s97, s98\ns_add_u32 s97, s97, s99')
    a('v_readlane_b32 s98, v%d, 0\nv_readlane_b32 s99, v%d, 1\ns_xor_b32 s98, s98, 32\ns_xor_b32 s99, s99, 64\ns_or_b32 s98, s98, s99', t + 3, t + 3)
    a('s_cmp_eq_u32 s98, 0\ns_cselect_b32 s98, 0x10000, 0\ns_or_b32 s97, s97, s98')
    a(L3 + ':\nv_mov_b32 v%d, %d\nv_mov_b32 v%d, s97\nds_write_b32 v%d, v%d\ns_waitcnt lgkmcnt(0)\ns_mov_b64 exec, -1', t, lds, t + 1, t, t + 1)
    a(L1 + ':\ns_barrier\nv_mov_b32 v%d, %d\nds_read_b32 v%d, v%d\ns_waitcnt lgkmcnt(0)\nv_readfirstlane_b32 s97, v%d\ns_barrier', t, lds, t + 1, t, t + 1)
    a('s_mov_b32 s%d, 1\ns_cmp_lg_u32 s97, -1\ns_cbranch_scc1 L_redo', S_VER)
    a(L + ':')
    a.lq = []

def redo(a, opt):
    a('L_redo:\ns_waitcnt vmcnt(0) lgkmcnt(0)')
    a('s_and_b32 s%d, s97, 0xffff\ns_lshr_b32 s%d, s97, 16\ns_mov_b32 s%d, 2', S_ROLE, S_FAST, S_VER)
    a('v_mbcnt_lo_u32_b32 v0, -1, 0\nv_mbcnt_hi_u32_b32 v0, -1, v0\ns_lshl_b32 s96, s%d, 6\nv_add_u32 v0, s96, v0', S_W)
    a('s_cmp_lt_u32 s%d, 256\ns_cbranch_scc1 L_dispatch\ns_branch L_end', S_ROLE)

def probe_parity(a):
    a('s_mov_b64 exec, 0x3f\nv_mov_b32 v2, 0')
    a('s_add_u32 s20, s6, %d\ns_addc_u32 s21, s7, 0', PROBE)
    a('v_mul_u32_u24 v1, 0x2400, v0\nglobal_store_dword v1, v2, s[20:21] sc1')
    a('s_mov_b32 s22, -1\ns_mov_b32 s23, -1\ns_mov_b64 exec, 1\ns_waitcnt vmcnt(0)')
    for i in range(6):
        p = i & 1
        a('v_mov_b32 v1, %d', i * 0x2400)
        a('s_memtime s[24:25]\ns_waitcnt lgkmcnt(0)')
        a('global_load_dword v3, v1, s[20:21] sc1\ns_waitcnt vmcnt(0)')
        a('s_memtime s[26:27]\ns_waitcnt lgkmcnt(0)')
        a('s_sub_u32 s24, s26, s24\ns_min_u32 s%d, s%d, s24', 22 + p, 22 + p)
    a('s_cmp_lt_u32 s23, s22\ns_cselect_b32 s22, 2, 1')
    a('s_lshr_b32 s23, s%d, 1\ns_lshl_b32 s23, s23, 2\nv_mov_b32 v1, s23\nv_mov_b32 v2, s22\nglobal_store_dword v1, v2, s[8:9] offset:%d sc1', S_VER, D_PAR * 4)
    a('s_mov_b64 exec, -1')

def get_parity(a, vt=1, vt2=2, st=15):
    L = a.label('L_par')
    a('s_lshr_b32 s%d, s%d, 1\ns_lshl_b32 s%d, s%d, 2\nv_mov_b32 v%d, s%d\ns_mov_b32 s%d, %d', st, S_VER, st, st, vt, st, st, SPIN)
    a(L + ':')
    a('global_load_dword v%d, v%d, s[8:9] offset:%d sc1', vt2, vt, D_PAR * 4)
    spin_guard(a, st, 2)
    a('s_waitcnt vmcnt(0)\nv_readfirstlane_b32 s%d, v%d\ns_cmp_eq_u32 s%d, 0\ns_cbranch_scc1 %s', S_PAR, vt2, S_PAR, L)
    a('s_sub_u32 s%d, s%d, 1', S_PAR, S_PAR)

def epilogue(a, ncodes=16):
    for c in range(1, ncodes):
        a('L_bail%d:\ns_mov_b32 s12, %d\ns_branch L_bail', c, c)
    a('L_bail:\ns_mov_b64 exec, 1\nv_mov_b32 v2, s12\nv_mov_b32 v1, %d\nglobal_store_dword v1, v2, s[8:9] sc1\ns_waitcnt vmcnt(0)', D_ERR * 4)
    a('L_end:\ns_endpgm')

def mark(a, opt, word, va, vb, neg=False):
    if not opt.get('mark'): return
    L = a.label('L_mk')
    a('s_cmp_lg_u32 s%d, 0\ns_cbranch_scc1 %s', S_W, L)
    a('s_memrealtime s[98:99]\ns_waitcnt lgkmcnt(0)')
    if neg: a('s_not_b32 s98, s98')
    a('s_mov_b64 s[96:97], exec\ns_mov_b64 exec, 1\nv_mov_b32 v%d, %d\nv_mov_b32 v%d, s98\nglobal_atomic_umax v%d, v%d, s[8:9]\ns_mov_b64 exec, s[96:97]', va, word * 4, vb, va, vb)
    a(L + ':')
```

```python
import sys, re
sys.path.insert(0, 'lib'); sys.path.insert(0, 'work')
from asmgen import *
from common import *
import g_pro, g_chain, g_bulk, g_parta
NAME = 'concat_heads__grouped_kv_mqa__memory_aug_recurrent_mem_tr__prompt_kernel'
def build(opt):
    a = Asm()
    if opt.get('tm'): a('s_memrealtime s[90:91]')
    g_pro.prologue(a, opt)
    if opt.get('forceslow'): a('s_mov_b32 s%d, 0', S_FAST)
    a('s_cmp_lt_u32 s%d, 64\ns_cbranch_scc1 L_chain', S_ROLE)
    g_pro.arrive1(a, 14, 15)
    a('s_waitcnt vmcnt(0)')
    g_pro.arrive2(a, 12, 14)
    a('s_cmp_lg_u32 s%d, 64\ns_cbranch_scc1 L_noprobe\ns_cmp_lg_u32 s%d, 0\ns_cbranch_scc1 L_noprobe2', S_ROLE, S_W)
    g_pro.probe_parity(a)
    a('L_noprobe2:\ns_barrier')
    a('L_noprobe:')
    if opt.get('nokv'):
        g_pro.verify(a, opt, 14, 16, 0)
        a('s_branch L_end')
    else:
        B = g_bulk
        B.lane_regs(a)
        if opt.get('noA'): a('s_mov_b32 s%d, 0', B.sTASK)
        a('s_cmp_lt_u32 s%d, 128\ns_cbranch_scc1 L_r_qa\ns_cmp_lt_u32 s%d, 160\ns_cbranch_scc1 L_r_k\ns_cmp_lt_u32 s%d, 192\ns_cbranch_scc1 L_r_v', S_ROLE, S_ROLE, S_ROLE)
        a('s_sub_u32 s%d, s%d, 192\ns_lshr_b32 s%d, s%d, 5\ns_and_b32 s%d, s%d, 31\ns_cmp_lt_u32 s%d, 20\ns_cbranch_scc1 L_orole', B.sT0, S_ROLE, B.sSEG, B.sT0, B.sH, B.sT0, B.sH)
        a('L_r_a:')
        g_pro.verify(a, opt, 14, 16, B.L_Q)
        a('s_branch L_queue')
        a('L_r_k:'); B.b_role(a, B.K_K, KA_WK, 128)
        a('L_r_v:'); B.b_role(a, B.K_V, KA_WV, 160)
        a('L_r_qa:'); B.b_role(a, B.K_QA, KA_WQ, 64)
        B.g_load(a, opt)
        B.kv_loops(a, opt)
        B.qa_role(a, opt, 2)
        B.o_role(a, opt, 2)
        if opt.get('noA'):
            a('L_queue:\nL_aq:\nL_ao:\nL_akv:\ns_branch L_done')
        else:
            g_parta.queue(a)
            g_parta.a_loops(a)
            g_parta.att(a, opt)
        a('L_done:')
        g_pro.mark(a, opt, 8, 2, 3)
        if opt.get('tm'):
            a('s_memrealtime s[94:95]\ns_waitcnt lgkmcnt(0)\ns_lshl_b32 s12, s%d, 4\ns_add_u32 s12, s12, %d\nv_mov_b32 v0, s12', S_ROLE, STAMP + 0x40000)
            a('v_mov_b32 v14, s90\nv_mov_b32 v15, s90\nv_mov_b32 v16, s94\nv_mov_b32 v17, 0\nglobal_store_dwordx4 v0, v[14:17], s[6:7]\ns_waitcnt vmcnt(0)')
        a('s_branch L_end')
    g_pro.redo(a, opt)
    g_pro.epilogue(a)
    a('L_chain:')
    g_chain.chain(a, opt)
    if opt.get('nocomm'):
        out = []; inl = False; ph = -1
        for l in a.lines:
            if l.startswith('L_var0:'): inl = True
            if l.startswith('L_chain_end:'): inl = False
            t = l.strip()
            if t.startswith('; PH'): ph = int(t[5:])
            if t.startswith('L_var'): ph = -1
            if inl:
                nc = opt['nocomm'] + opt.get('ph', {}).get(ph, '')
                if 'w' in nc and t.startswith('s_waitcnt'): continue
                if 's' in nc and re.match(r's_(add|addc|xor|and|lshl|lshr|mul|bfe|mov|min)', t) and not t.startswith('s_add_u32 s14, s14, 1'): continue
                if 'g' in nc and t.startswith('global_'): continue
                if 'D' in nc and t.startswith('global_load_lds'): continue
                if 'K' in nc and t.startswith('global_store') and 's[40:41]' in t: continue
                if 'g' in nc and t.startswith('s_cbranch_vccnz'): continue
                if 'm' in nc and t.startswith('v_smfmac'): continue
                if 'd' in nc and t.startswith('v_mfma'): continue
                if 'l' in nc and t.startswith('ds_'): continue
                if 'b' in nc and t.startswith('s_barrier'): continue
                if 'v' in nc and re.match(r'v_(?!smfmac|mfma)', t): continue
            out.append(l)
        a.lines = out
    hdr = ''.join(l for l in open('cdna_kernels/' + NAME[:-7] + '.s.ref').readlines()[:18]) if opt.get('final') else ''
    return kernel_wrap(NAME, a.text(fix=True), '; @launch grid=(256,1,1) block=(256,1,1) lds=163840', vgpr=512, sgpr=102, accum=256, header=hdr)
if __name__ == '__main__':
    opt = eval(sys.argv[2]) if len(sys.argv) > 2 else {}
    open(sys.argv[1], 'w').write(build(opt))
```
